```python
import torch

def _softmax(x, axis=-1):
    return torch.softmax(x, dim=axis)
def _gelu(x):
    return torch.nn.functional.gelu(x, approximate="tanh")
def _silu(x):
    return torch.nn.functional.silu(x)
def _sigmoid(x):
    return torch.sigmoid(x)
def _layernorm(x, axis=-1, eps=1e-5):
    m = x.mean(dim=axis, keepdim=True)
    v = x.var(dim=axis, keepdim=True, unbiased=False)
    return (x - m) / torch.sqrt(v + eps)
def _scatter_add(tgt, idx, src, axis=0):
    return tgt.clone().index_add_(axis, idx, src)
def _segment_sum(src, seg, n):
    out = torch.zeros((n,) + src.shape[1:], dtype=src.dtype)
    return out.index_add_(0, seg, src)
def _pad(x, pw):
    flat = tuple(v for pair in reversed(pw) for v in pair)
    return torch.nn.functional.pad(x, flat)

kernel_name = 'recurrent_scan__sliding_block_cached__swiglu_ffn__decode'

def setup_inputs():

    _w = (lambda a: (lambda t: t.to(torch.bfloat16) if t.is_floating_point() else t)(torch.as_tensor(a)))
    def _A_setup():
        B, Sq, D = 1, 1, 640
        Hq, Hkv, Sk, Dh = 32, 32, 32768, 128
        assert Hq % Hkv == 0, (Hq, Hkv)
        return {
            "x": _w((lambda *s: torch.randn(*s, dtype=torch.bfloat16) * 0.05)(B, Sq, D)),
            "k_cache": _w((lambda *s: torch.randn(*s, dtype=torch.bfloat16) * 1.6)(B, Hkv, Sk, Dh)),
            "v_cache": _w((lambda *s: torch.randn(*s, dtype=torch.bfloat16) * 0.2)(B, Hkv, Sk, Dh)),
            "wq": _w((lambda *s: torch.randn(*s, dtype=torch.bfloat16) * 1.6)(D, Hq * Dh) * (D ** -0.5)),
            "wo": _w((lambda *s: torch.randn(*s, dtype=torch.bfloat16) * 0.2)(Hq * Dh, D) * ((Hq * Dh) ** -0.5)),
        }
    _A_in = _A_setup()

    def _B_setup():
        B, S, D, F = 1, 1, 640, 1728
        return {
            "x": _w((lambda *s: torch.randn(*s, dtype=torch.bfloat16) * 0.05)(B, S, D)),
            "w_gate": _w((lambda *s: torch.randn(*s, dtype=torch.bfloat16) * 0.1)(D, F)),
            "w_up": _w((lambda *s: torch.randn(*s, dtype=torch.bfloat16) * 0.1)(D, F)),
            "w_down": _w((lambda *s: torch.randn(*s, dtype=torch.bfloat16) * 0.1)(F, D)),
        }
    _B_in = _B_setup()

    return {
        "A_x": _A_in["x"],
        "A_k_cache": _A_in["k_cache"],
        "A_v_cache": _A_in["v_cache"],
        "A_wq": _A_in["wq"],
        "A_wo": _A_in["wo"],
        "B_x": _B_in["x"],
        "B_w_gate": _B_in["w_gate"],
        "B_w_up": _B_in["w_up"],
        "B_w_down": _B_in["w_down"],
    }

def reference(A_x, A_k_cache, A_v_cache, A_wq, A_wo, B_x, B_w_gate, B_w_up, B_w_down):
    def _A_ref(x, k_cache, v_cache, wq, wo):
        B, Sq, D = x.shape
        Hq, Dh = 32, 128
        Hkv, Sk = k_cache.shape[1], k_cache.shape[2]
        W = min(4096, max(256, Sk // 4))
        rep = Hq // Hkv
        q = (lambda x, *d: x.permute(*d))((x @ wq).reshape(B, Sq, Hq, Dh), 0, 2, 1, 3)
        k = (lambda x, n, axis: torch.repeat_interleave(x, n, dim=axis))(k_cache[:, :, Sk - W:, :], rep, axis=1)
        v = (lambda x, n, axis: torch.repeat_interleave(x, n, dim=axis))(v_cache[:, :, Sk - W:, :], rep, axis=1)
        scores = torch.einsum("bhqd,bhkd->bhqk", q, k) * (Dh ** -0.5)
        p = _softmax(scores, axis=-1)
        o = torch.einsum("bhqk,bhkd->bhqd", p, v)
        return (lambda x, *d: x.permute(*d))(o, 0, 2, 1, 3).reshape(B, Sq, Hq * Dh) @ wo

    def _B_ref(x, w_gate, w_up, w_down):
        g = _silu(x @ w_gate)
        u = x @ w_up
        return (g * u) @ w_down

    x = A_x
    xn = _layernorm(x, axis=-1)
    s = _A_ref(xn, A_k_cache, A_v_cache, A_wq, A_wo)
    g = _silu(_B_ref(xn, B_w_gate, B_w_up, B_w_down))
    return x + s * g
```

```python
import re
_VR = re.compile(r"\bv\[(\d+):(\d+)\]|\bv(\d+)\b")
_SR = re.compile(r"\bs\[(\d+):(\d+)\]|\bs(\d+)\b|\b(vcc)\b")
TRANS = ("v_exp_f32", "v_log_f32", "v_rcp_f32", "v_rsq_f32", "v_sqrt_f32", "v_sin_f32", "v_cos_f32")
def regs(rx, s):
    out = set()
    for m in rx.finditer(s):
        if m.group(1) is not None: out.update(range(int(m.group(1)), int(m.group(2)) + 1))
        elif m.group(3) is not None: out.add(int(m.group(3)))
        else: out.update((106, 107))
    return out
def split_ops(rest):
    ops, depth, cur = [], 0, ""
    for ch in rest:
        if ch == "[": depth += 1
        if ch == "]": depth -= 1
        if ch == "," and depth == 0: ops.append(cur.strip()); cur = ""
        else: cur += ch
    if cur.strip(): ops.append(cur.strip())
    return ops
class Ins:
    def __init__(s, text):
        s.text = text
        t = text.split(";")[0].strip()
        p = t.split(None, 1)
        s.op = p[0]; s.ops = split_ops(p[1]) if len(p) > 1 else []
        op = s.op
        s.valu = op.startswith("v_")
        s.vmem = op.startswith(("buffer_", "global_", "flat_"))
        s.ds = op.startswith("ds_")
        s.dpp = "_dpp" in op or any(k in t for k in ("row_", "quad_perm"))
        s.perm = op.startswith("v_permlane")
        s.trans = op.replace("_e32", "").replace("_e64", "") in TRANS
        s.dot = op.startswith("v_dot")
        s.base = op.replace("_dpp", "").replace("_e32", "").replace("_e64", "")
        s.vw, s.vr, s.sw, s.sr = set(), set(), set(), set()
        s.states = 1
        if op == "s_nop": s.states = int(s.ops[0]) + 1
        if s.valu:
            d = s.ops[0]
            srcs = s.ops[1:]
            if op.startswith(("v_cmp", "v_readlane", "v_readfirstlane")):
                s.sw = regs(_SR, d)
            else:
                s.vw = regs(_VR, d)
                if op.startswith(("v_add_co", "v_addc_co", "v_sub_co")): s.sw = regs(_SR, s.ops[1]); srcs = s.ops[2:]
            for o in srcs:
                s.vr |= regs(_VR, o); s.sr |= regs(_SR, o)
            if s.perm: s.vw |= regs(_VR, s.ops[1]); s.vr |= regs(_VR, d)
            if s.base in ("v_fmac_f32", "v_dot2c_f32_bf16") or s.dpp: s.vr |= regs(_VR, d) if not s.sw else set()
            s.dppsrc = regs(_VR, s.ops[1]) if s.dpp else set()
        elif s.vmem:
            for o in s.ops: s.sr |= regs(_SR, o)
            if "load" in op: s.vw = regs(_VR, s.ops[0]); s.vr = regs(_VR, ",".join(s.ops[1:]))
            else: s.vr = regs(_VR, ",".join(s.ops))
            s.widestore = ("store" in op and ("x3" in op or "x4" in op))
            s.sdata = regs(_VR, s.ops[0]) if s.widestore else set()
        elif s.ds:
            s.vr = regs(_VR, ",".join(s.ops))
            if "read" in op or "rtn" in op: s.vw = regs(_VR, s.ops[0])
def need(p, c):
    n = 0
    if p.valu:
        if c.valu and c.dpp and (p.vw & c.dppsrc): n = max(n, 2)
        if c.valu and c.perm and (p.vw & c.vr): n = max(n, 2)
        if p.trans and c.valu and not c.trans and (p.vw & (c.vr | c.vw)): n = max(n, 1)
        if p.trans and (c.vmem or c.ds) and (p.vw & c.vr): n = max(n, 1)
        if p.sw and c.valu and (p.sw & c.sr): n = max(n, 4 if c.op.startswith(("v_readlane", "v_writelane")) else 2)
        if p.sw and c.valu and c.base == "v_cndmask_b32" and len(c.ops) == 3 and (p.sw & {106, 107}): n = max(n, 2)
        if p.sw and c.vmem and (p.sw & c.sr): n = max(n, 5)
        if p.sw and c.op.startswith("s_") and not c.op.startswith(("s_nop", "s_waitcnt")):
            if p.sw & regs(_SR, ",".join(c.ops)) or ("vcc" in c.op and p.sw & {106, 107}): n = max(n, 1)
        if c.op.startswith(("v_readlane", "v_readfirstlane")) and (p.vw & c.vr): n = max(n, 1)
        if p.dot and (p.vw & (c.vr | c.vw)):
            same = c.valu and c.base == p.base
            if same:
                ab = set()
                for o in c.ops[1:3]: ab |= regs(_VR, o)
                if p.vw & ab: n = max(n, 3)
            else: n = max(n, 3)
    if p.vmem and getattr(p, "widestore", False) and (p.sdata & c.vw): n = max(n, 2)
    return n
class Asm:
    def __init__(s):
        s.lines = []; s.hist = []; s.nl = 0
    def raw(s, t): s.lines.append(t)
    def label(s, name):
        s.lines.append(name + ":")
    def newlabel(s, p="L"):
        s.nl += 1; return f"{p}_{s.nl}"
    def __call__(s, text):
        for t in text.strip().split("\n"):
            t = t.strip()
            if not t or t.startswith(";"): continue
            if t.endswith(":"): s.label(t[:-1]); continue
            c = Ins(t)
            dist = 0; pad = 0
            for p in reversed(s.hist[-8:]):
                n = need(p, c)
                if n > dist: pad = max(pad, n - dist)
                dist += p.states
                if dist >= 6: break
            if pad:
                nop = Ins(f"s_nop {pad-1}"); s.hist.append(nop); s.lines.append("  " + nop.text)
            s.hist.append(c); s.lines.append("  " + t)
    def text(s): return "\n".join(s.lines) + "\n"
```

```python
import sys
sys.path.insert(0, "gen")
from asmlib import Asm
KN = "recurrent_scan__sliding_block_cached__swiglu_ffn__decode_kernel"
HDR = open("recurrent_scan__sliding_block_cached__swiglu_ffn__decode.s.ref").read().split("; Override launch")[0]

GS = 3 * 4096 + 256
WS_E, WS_R, WS_G = 0, 0x1000, 0x2000
WS_F, WS_ML, WS_OA, WS_OB = WS_G, WS_G + 2048, WS_G + 4096, WS_G + 8192
WS_T = 0x80000
T_END = WS_T + 91 * 2560
L_QF, L_C1, L_C2, L_TAG, L_WF, L_W, L_POST, L_OACC, L_Q, L_H = 0, 4, 8, 12, 16, 32, 64, 256, 768, 1024
LDS_BYTES = 1280
SPIN = 20000
LOG2E = "0x3fb8aa3b"
SCALE = "0x3db504f3"

def gen(path, stamps=False, rotmul=5, jrot=True, kvmode="chunk", a2first=64, a2sleep=12, mlsleep=4):
    a = Asm()
    a.raw(HDR.rstrip())
    a.raw(f"; @launch grid=(256,1,1) block=(768,1,1) lds={LDS_BYTES}")
    a.raw('.amdgcn_target "amdgcn-amd-amdhsa--gfx950"')
    a.raw(".text"); a.raw(f".globl {KN}"); a.raw(".p2align 8"); a.raw(f".type {KN},@function"); a.raw(f"{KN}:")
    def stamp(i):
        if stamps:
            a(f"s_memrealtime s[{80+2*(i%8)}:{81+2*(i%8)}]\ns_waitcnt lgkmcnt(0)")
    def flush_stamps(idx, cond=None):
        if not stamps: return
        a("s_mov_b64 exec, 1\nv_mov_b32 v2, 0\ns_lshl_b32 s48, s2, 7\ns_add_u32 s48, s48, 0x20000000")
        for i in idx:
            a(f"v_mov_b32 v4, s{80+2*(i%8)}\nv_mov_b32 v5, s{81+2*(i%8)}\nbuffer_store_dwordx2 v[4:5], v2, s[8:11], s48 offen offset:{8*i}\ns_nop 1")
        a("s_mov_b64 exec, -1")
    def allreduce(op, v, t):
        for r in (8, 4, 2, 1):
            a(f"{op}_dpp {v}, {v}, {v} row_ror:{r} row_mask:0xf bank_mask:0xf")
        a(f"v_mov_b32 {t}, {v}\nv_permlane16_swap_b32 {t}, {v}\n{op} {v}, {t}, {v}")
        a(f"v_mov_b32 {t}, {v}\nv_permlane32_swap_b32 {t}, {v}\n{op} {v}, {t}, {v}")
    def lds_spin(off, val, sleep=2):
        L = a.newlabel("Lsp"); X = a.newlabel("Lspx")
        a(f"s_mov_b32 s58, {SPIN}\nv_mov_b32 v7, 0")
        a.label(L)
        a(f"ds_read_b32 v2, v7 offset:{off}\ns_waitcnt lgkmcnt(0)\nv_readfirstlane_b32 s48, v2\ns_cmp_ge_u32 s48, {val}\ns_cbranch_scc1 {X}")
        a(f"s_sleep {sleep}\ns_sub_u32 s58, s58, 1\ns_cbranch_scc0 {L}")
        a.label(X)

    if stamps: a("s_memrealtime s[80:81]")
    a(f"""
    s_cmp_ge_u32 s2, 256
    s_cbranch_scc1 L_end
    s_load_dwordx2 s[40:41], s[0:1], 8
    s_load_dwordx2 s[44:45], s[0:1], 16
    s_load_dwordx2 s[8:9], s[0:1], 88
    s_load_dwordx16 s[16:31], s[0:1], 0
    s_load_dwordx4 s[32:35], s[0:1], 64
    v_lshrrev_b32 v1, 6, v0
    v_and_b32 v0, 63, v0
    s_lshr_b32 s4, s2, 3
    v_readfirstlane_b32 s3, v1
    v_lshlrev_b32 v1, 4, v0
    v_mov_b32 v4, 0
    v_mov_b32 v5, 0
    v_mov_b32 v6, 0
    v_mov_b32 v7, 0
    """)
    if jrot: a("s_add_u32 s5, s2, s4\ns_and_b32 s5, s5, 7")
    else: a("s_and_b32 s5, s2, 7")
    a(f"""
    ds_write_b128 v1, v[4:7]
    s_mov_b32 s42, 0x10000000
    s_mov_b32 s43, 0x20000
    s_mov_b32 s46, 0x10000000
    s_mov_b32 s47, 0x20000
    s_mov_b32 s10, 0x40000000
    s_mov_b32 s11, 0x20000
    s_mul_i32 s12, s4, {GS}
    s_lshl_b32 s48, s4, 23
    s_add_u32 s48, s48, {28672*256}
    s_mul_i32 s49, s2, {rotmul}
    s_add_u32 s49, s49, s3
    """)
    if kvmode == "chunk":
        a("s_lshl_b32 s50, s5, 17\ns_add_u32 s48, s48, s50")
        for n in range(4):
            a(f"s_add_u32 s50, s49, {8*n}\ns_and_b32 s50, s50, 31\ns_lshl_b32 s50, s50, 12\ns_add_u32 s{52+n}, s48, s50")
    else:
        a("s_lshl_b32 s50, s5, 12\ns_add_u32 s48, s48, s50")
        for n in range(4):
            a(f"s_add_u32 s50, s49, {8*n}\ns_and_b32 s50, s50, 31\ns_lshl_b32 s50, s50, 15\ns_add_u32 s{52+n}, s48, s50")
    a(f"""
    s_cmp_lt_u32 s3, 4
    s_waitcnt lgkmcnt(0)
    s_barrier
    s_cbranch_scc1 L_A
    s_setprio 1
    """)
    K0, V0, ACC = 24, 88, 16
    for t, (base, srd) in enumerate(((K0, "s[40:43]"), (V0, "s[44:47]"))):
        for i in range(16):
            r = base + 4 * i
            a(f"buffer_load_dwordx4 v[{r}:{r+3}], v1, {srd}, s{52+i//4} offen offset:{(i%4)*1024} nt")
    stamp(5)
    a("s_sub_u32 s6, s3, 4")
    a("s_mov_b32 s60, 0xcccccccc\ns_mov_b32 s61, 0xcccccccc\ns_mov_b32 s62, 0xaaaaaaaa\ns_mov_b32 s63, 0xaaaaaaaa")
    a("v_and_b32 v3, 15, v0\nv_lshlrev_b32 v3, 4, v3")
    for e in range(8): a(f"v_mov_b32 v{ACC+e}, 0")
    lds_spin(L_QF, 1)
    a(f"ds_read_b128 v[8:11], v3 offset:{L_Q}\ns_waitcnt vmcnt(16) lgkmcnt(0)")
    T = lambda i: f"v{K0+4*i}"
    for i in range(16): a(f"v_dot2_f32_bf16 {T(i)}, {T(i)}, v8, 0")
    for t in range(1, 4):
        for i in range(16): a(f"v_dot2c_f32_bf16 {T(i)}, v{K0+4*i+t}, v{8+t}")
    for k in range(8): a(f"v_add_f32_dpp {T(k)}, {T(k)}, {T(k)} row_ror:8 row_mask:0xf bank_mask:0x3")
    for k in range(8): a(f"v_add_f32_dpp {T(k)}, {T(k+8)}, {T(k+8)} row_ror:8 row_mask:0xf bank_mask:0xc")
    for k in range(4): a(f"v_add_f32_dpp {T(k)}, {T(k)}, {T(k)} row_shl:4 row_mask:0xf bank_mask:0x5")
    for k in range(4): a(f"v_add_f32_dpp {T(k)}, {T(k+4)}, {T(k+4)} row_shr:4 row_mask:0xf bank_mask:0xa")
    for k in range(4): a(f"v_add_f32_dpp {T(k)}, {T(k)}, {T(k)} quad_perm:[2,3,0,1] row_mask:0xf bank_mask:0xf")
    for k in range(2): a(f"v_cndmask_b32 {T(k)}, {T(k)}, {T(k+2)}, s[60:61]")
    for k in range(2): a(f"v_add_f32_dpp {T(k)}, {T(k)}, {T(k)} quad_perm:[1,0,3,2] row_mask:0xf bank_mask:0xf")
    a(f"""
    v_cndmask_b32 v2, {T(0)}, {T(1)}, s[62:63]
    v_cvt_pk_bf16_f32 v2, 0, v2
    v_mul_f32 v2, {SCALE}, v2
    v_cvt_pk_bf16_f32 v2, 0, v2
    v_mul_f32 v2, {LOG2E}, v2
    v_mov_b32 v14, v2
    """)
    allreduce("v_max_f32", "v14", "v3")
    a(f"""
    v_sub_f32 v2, v2, v14
    v_exp_f32 v2, v2
    s_lshl_b32 s48, s6, 3
    v_mov_b32 v6, s48
    v_mov_b32 v15, v2
    v_cvt_pk_bf16_f32 v12, v2, 0
    v_cvt_pk_bf16_f32 v13, 0, v2
    """)
    allreduce("v_add_f32", "v15", "v3")
    a(f"""
    v_mov_b32 v4, 1
    s_mov_b64 exec, 1
    ds_write_b64 v6, v[14:15] offset:{L_POST}
    ds_add_u32 v7, v4 offset:{L_C1}
    s_mov_b64 exec, -1
    """)
    stamp(6)
    def pv(i):
        a(f"s_waitcnt vmcnt({15-i})")
        for t in range(4):
            a(f"v_dot2c_f32_bf16_dpp v{ACC+2*t}, v12, v{V0+4*i+t} row_newbcast:{i} row_mask:0xf bank_mask:0xf")
            a(f"v_dot2c_f32_bf16_dpp v{ACC+2*t+1}, v13, v{V0+4*i+t} row_newbcast:{i} row_mask:0xf bank_mask:0xf")
    for i in range(12): pv(i)
    lds_spin(L_C1, 8, sleep=1)
    a(f"""
    v_and_b32 v3, 7, v0
    v_lshlrev_b32 v3, 3, v3
    ds_read_b64 v[4:5], v3 offset:{L_POST}
    s_waitcnt lgkmcnt(0)
    v_mov_b32 v2, v4
    """)
    for r in (4, 2, 1): a(f"v_max_f32_dpp v2, v2, v2 row_ror:{r} row_mask:0xf bank_mask:0xf")
    a(f"""
    v_sub_f32 v15, v14, v2
    v_sub_f32 v4, v4, v2
    v_exp_f32 v15, v15
    v_exp_f32 v4, v4
    s_cmp_lg_u32 s6, 0
    v_mul_f32 v3, v4, v5
    s_cbranch_scc1 L_noml
    """)
    for r in (4, 2, 1): a(f"v_add_f32_dpp v3, v3, v3 row_ror:{r} row_mask:0xf bank_mask:0xf")
    a(f"""
    s_lshl_b32 s49, s5, 3
    s_add_u32 s48, s12, s49
    s_add_u32 s48, s48, {WS_ML}
    s_mov_b64 exec, 1
    buffer_store_dwordx2 v[2:3], v7, s[8:11], s48 offen sc1
    s_mov_b64 exec, -1
    """)
    stamp(14)
    a.label("L_noml")
    a(f"""
    v_and_b32 v3, 15, v0
    v_lshrrev_b32 v4, 4, v0
    v_lshlrev_b32 v3, 5, v3
    v_lshl_or_b32 v6, v4, 3, v3
    v_lshlrev_b32 v5, 2, v0
    v_mov_b32 v4, 1
    s_lshl_b32 s49, s5, 9
    s_add_u32 s51, s12, s49
    s_add_u32 s51, s51, {WS_OB}
    """)
    for i in range(12, 16): pv(i)
    stamp(15)
    A = lambda e: f"v{ACC+e}"
    for e in range(4): a(f"v_permlane32_swap_b32 {A(e)}, {A(e+4)}")
    for e in range(4): a(f"v_add_f32 {A(e)}, {A(e)}, {A(e+4)}")
    for e in range(2): a(f"v_permlane16_swap_b32 {A(e)}, {A(e+2)}")
    for e in range(2): a(f"v_add_f32 {A(e)}, {A(e)}, {A(e+2)}")
    a(f"""
    v_mul_f32 {A(0)}, {A(0)}, v15
    v_mul_f32 {A(1)}, {A(1)}, v15
    ds_add_f32 v5, {A(0)} offset:{L_OACC}
    ds_add_f32 v5, {A(1)} offset:{L_OACC+256}
    s_mov_b64 exec, 1
    ds_add_rtn_u32 v2, v7, v4 offset:{L_C2}
    s_mov_b64 exec, -1
    s_waitcnt lgkmcnt(0)
    v_readfirstlane_b32 s48, v2
    s_cmp_lg_u32 s48, 7
    s_cbranch_scc1 L_notlast
    ds_read2st64_b32 v[2:3], v5 offset0:{L_OACC//256} offset1:{L_OACC//256+1}
    s_waitcnt lgkmcnt(0)
    buffer_store_dwordx2 v[2:3], v6, s[8:11], s51 offen sc1
    """)
    if stamps:
        stamp(7); flush_stamps([7])
    a.label("L_notlast")
    if stamps:
        a("s_cmp_lg_u32 s6, 7\ns_cbranch_scc1 L_ns7")
        flush_stamps([5, 6, 15])
        a.label("L_ns7")
        a("s_cmp_lg_u32 s6, 0\ns_cbranch_scc1 L_ns0")
        flush_stamps([14])
        a.label("L_ns0")
    a(f"""
    s_cmp_lg_u32 s6, 0
    s_cbranch_scc1 L_end
    s_cmp_ge_u32 s2, 80
    s_cbranch_scc1 L_end
    """)
    a(f"""
    s_setprio 3
    s_mov_b32 s40, s8
    s_mov_b32 s41, s9
    s_mov_b32 s42, {T_END}
    s_mov_b32 s44, s16
    s_mov_b32 s45, s17
    s_mov_b32 s46, 1280
    v_lshrrev_b32 v3, 1, v0
    v_and_b32 v4, 1, v0
    v_mul_u32_u24 v3, 2560, v3
    v_lshl_add_u32 v8, v4, 4, v3
    s_lshl_b32 s48, s2, 5
    s_add_u32 s52, s48, {WS_T}
    s_add_u32 s53, s48, {WS_T+32*2560}
    s_add_u32 s54, s48, {WS_T+64*2560}
    v_lshrrev_b32 v3, 5, v0
    v_bfe_u32 v5, v0, 4, 1
    v_lshlrev_b32 v4, 2, v4
    v_lshl_add_u32 v4, v3, 1, v4
    v_add_u32 v4, v4, v5
    v_lshlrev_b32 v9, 1, v4
    s_lshl_b32 s55, s2, 4
    buffer_load_ushort v10, v9, s[44:47], s55 offen
    ds_read_b32 v11, v7 offset:{L_TAG}
    s_mov_b32 s44, s34
    s_mov_b32 s45, s35
    s_mov_b32 s58, {SPIN}
    """)
    a.label("L_rpoll")
    a(f"""
    buffer_load_dwordx4 v[24:27], v8, s[40:43], s52 offen sc1
    buffer_load_dwordx4 v[28:31], v8, s[40:43], s53 offen sc1
    buffer_load_dwordx4 v[32:35], v8, s[40:43], s54 offen sc1
    s_sub_u32 s58, s58, 1
    s_cbranch_scc1 L_rgo
    s_waitcnt vmcnt(0)
    v_max3_u32 v2, v24, v25, v26
    v_max3_u32 v3, v27, v28, v29
    v_max3_u32 v4, v30, v31, v32
    v_max3_u32 v5, v33, v34, v35
    v_max3_u32 v2, v2, v3, v4
    v_max_u32 v2, v2, v5
    v_cmp_eq_u32 vcc, -1, v2
    s_cbranch_vccnz L_rpoll
    """)
    a.label("L_rgo")
    a("s_waitcnt vmcnt(0) lgkmcnt(0)")
    stamp(12)
    for e in range(4): a(f"v_add_f32 v{24+e}, v{24+e}, v{28+e}")
    a("""
    v_permlane32_swap_b32 v32, v34
    v_permlane32_swap_b32 v33, v35
    v_permlane32_swap_b32 v24, v26
    v_permlane32_swap_b32 v25, v27
    v_add_f32 v32, v32, v34
    v_add_f32 v33, v33, v35
    v_add_f32 v24, v24, v26
    v_add_f32 v25, v25, v27
    v_permlane16_swap_b32 v32, v33
    v_lshlrev_b32 v10, 16, v10
    v_permlane16_swap_b32 v24, v25
    v_add_f32 v32, v32, v33
    v_add_f32 v24, v24, v25
    """)
    for r in (8, 4, 2):
        a(f"v_add_f32_dpp v32, v32, v32 row_ror:{r} row_mask:0xf bank_mask:0xf")
        a(f"v_add_f32_dpp v24, v24, v24 row_ror:{r} row_mask:0xf bank_mask:0xf")
    a(f"""
    v_cvt_pk_bf16_f32 v32, 0, v32
    v_cvt_pk_bf16_f32 v24, 0, v24
    v_mul_f32 v2, 0xbfb8aa3b, v32
    v_exp_f32 v2, v2
    s_mov_b32 s48, 0x00030003
    s_mov_b32 s49, 0x00030003
    v_add_f32 v2, 1.0, v2
    v_rcp_f32 v2, v2
    v_mul_f32 v2, v32, v2
    v_cvt_pk_bf16_f32 v2, 0, v2
    v_mul_f32 v2, v24, v2
    v_cvt_pk_bf16_f32 v2, 0, v2
    v_add_f32 v2, v10, v2
    v_cvt_pk_bf16_f32 v2, v2, v2
    s_mov_b64 exec, s[48:49]
    buffer_store_short v2, v9, s[44:47], s55 offen
    s_cmp_lg_u32 s2, 0
    s_cbranch_scc1 L_rnb
    s_mov_b64 exec, 1
    buffer_store_dword v11, v7, s[8:11], 0 offen sc1
    """)
    a.label("L_rnb")
    if stamps:
        a("s_waitcnt vmcnt(0)")
        stamp(13); flush_stamps([12, 13])
    a.label("L_end")
    a("s_endpgm")

    a.raw(".p2align 6")
    a.label("L_A")
    a(f"""
    s_setprio 3
    s_load_dword s50, s[8:9], {WS_E}
    s_lshr_b32 s6, s5, 1
    s_and_b32 s7, s5, 1
    s_cmp_eq_u32 s3, 2
    s_cbranch_scc1 L_A2
    s_cmp_eq_u32 s3, 3
    s_cbranch_scc1 L_A3
    s_mov_b32 s44, s16
    s_mov_b32 s45, s17
    s_mov_b32 s46, 1280
    v_mul_u32_u24 v2, 20, v0
    v_lshrrev_b32 v3, 3, v0
    v_mul_u32_u24 v4, 40, v3
    s_mul_i32 s48, s6, 320
    s_cmp_eq_u32 s3, 1
    s_cbranch_scc1 L_A1
    s_mov_b32 s40, s22
    s_mov_b32 s41, s23
    s_mov_b32 s42, {640*8192}
    s_movk_i32 s52, 8192
    s_lshl_b32 s53, s4, 8
    s_lshl_b32 s54, s7, 7
    s_add_u32 s53, s53, s54
    s_mov_b32 s55, s7
    s_branch L_A01
    """)
    a.label("L_A1")
    a(f"""
    s_cmp_ge_u32 s4, 27
    s_cbranch_scc1 L_Aflag
    s_cmp_eq_u32 s7, 0
    s_cselect_b32 s40, s28, s30
    s_cselect_b32 s41, s29, s31
    s_mov_b32 s42, {640*3456}
    s_movk_i32 s52, 3456
    s_lshl_b32 s53, s4, 7
    s_add_u32 s55, s7, 2
    """)
    a.label("L_A01")
    W0 = 24
    a(f"""
    buffer_load_dwordx4 v[104:107], v2, s[44:47], 0 offen
    buffer_load_dword v108, v2, s[44:47], 0 offen offset:16
    buffer_load_dwordx4 v[110:113], v4, s[44:47], s48 offen
    buffer_load_dwordx4 v[114:117], v4, s[44:47], s48 offen offset:16
    buffer_load_dwordx2 v[118:119], v4, s[44:47], s48 offen offset:32
    s_mul_i32 s49, s52, 20
    s_mul_i32 s54, s6, 160
    s_mul_i32 s54, s54, s52
    s_add_u32 s53, s53, s54
    v_and_b32 v5, 7, v0
    v_lshlrev_b32 v6, 4, v5
    v_mad_u32_u24 v6, v3, s49, v6
    """)
    for i in range(20):
        a(f"buffer_load_dwordx4 v[{W0+4*i}:{W0+4*i+3}], v6, s[40:43], s53 offen nt")
        if i < 19: a("s_add_u32 s53, s53, s52")
    a("s_mov_b32 s56, 0xffff0000\ns_mov_b32 s60, 0x05040100\ns_mov_b32 s61, 0x07060302")
    for e in range(8): a(f"v_mov_b32 v{ACC+e}, 0")
    a(f"""
    v_lshl_add_u32 v9, v5, 3, v3
    v_lshlrev_b32 v9, 2, v9
    s_lshl_b32 s49, s6, 10
    s_add_u32 s48, s12, s49
    s_lshl_b32 s49, s55, 8
    s_add_u32 s48, s48, s49
    s_add_u32 s57, s48, {WS_OA}
    s_waitcnt vmcnt(23)
    """)
    for k in range(5):
        a(f"v_lshlrev_b32 v{120+2*k}, 16, v{104+k}\nv_and_b32 v{121+2*k}, s56, v{104+k}")
    a("v_add_f32 v2, v120, v121")
    for k in range(2, 10): a(f"v_add_f32 v2, v2, v{120+k}")
    allreduce("v_add_f32", "v2", "v4")
    a("v_mul_f32 v2, 0x3acccccd, v2")
    for k in range(10): a(f"v_sub_f32 v{120+k}, v{120+k}, v2")
    a("v_mul_f32 v5, v120, v120")
    for k in range(1, 10): a(f"v_fmac_f32 v5, v{120+k}, v{120+k}")
    allreduce("v_add_f32", "v5", "v4")
    a(f"""
    v_mul_f32 v5, 0x3acccccd, v5
    v_cvt_pk_bf16_f32 v2, 0, v2
    v_cvt_pk_bf16_f32 v5, 0, v5
    v_add_f32 v5, 0x3727c5ac, v5
    v_cvt_pk_bf16_f32 v5, 0, v5
    v_sqrt_f32 v5, v5
    v_cvt_pk_bf16_f32 v5, 0, v5
    v_rcp_f32 v5, v5
    s_waitcnt vmcnt(20)
    """)
    for k in range(10):
        x = 110 + k
        a(f"""
        v_lshlrev_b32 v120, 16, v{x}
        v_and_b32 v121, s56, v{x}
        v_sub_f32 v120, v120, v2
        v_sub_f32 v121, v121, v2
        v_cvt_pk_bf16_f32 v120, 0, v120
        v_cvt_pk_bf16_f32 v121, 0, v121
        v_mul_f32 v120, v120, v5
        v_mul_f32 v121, v121, v5
        v_cvt_pk_bf16_f32 v{130+k}, v120, v121
        """)
    for k in range(10):
        a(f"s_waitcnt vmcnt({18-2*k})")
        for t in range(4):
            lo, hi = W0 + 8 * k + t, W0 + 8 * k + 4 + t
            a(f"v_perm_b32 v{140+t}, v{hi}, v{lo}, s61\nv_perm_b32 v{lo}, v{hi}, v{lo}, s60")
        for t in range(4):
            lo = W0 + 8 * k + t
            a(f"v_dot2c_f32_bf16 {A(2*t)}, v{lo}, v{130+k}\nv_dot2c_f32_bf16 {A(2*t+1)}, v{140+t}, v{130+k}")
    for e in range(4): a(f"v_permlane32_swap_b32 {A(e)}, {A(e+4)}")
    for e in range(4): a(f"v_add_f32 {A(e)}, {A(e)}, {A(e+4)}")
    for e in range(2): a(f"v_permlane16_swap_b32 {A(e)}, {A(e+2)}")
    for e in range(2): a(f"v_add_f32 {A(e)}, {A(e)}, {A(e+2)}")
    a(f"""
    v_add_f32_dpp {A(0)}, {A(0)}, {A(0)} row_ror:8 row_mask:0xf bank_mask:0x3
    v_add_f32_dpp {A(0)}, {A(1)}, {A(1)} row_ror:8 row_mask:0xf bank_mask:0xc
    buffer_store_dword {A(0)}, v9, s[8:11], s57 offen sc1
    """)
    stamp(1)
    a("s_waitcnt vmcnt(0)")
    stamp(2)
    a.label("L_Aflag")
    a(f"""
    s_waitcnt lgkmcnt(0)
    s_mul_i32 s50, s50, 0x9e3779b1
    s_add_u32 s50, s50, 0x7f4a7c15
    s_lshl_b32 s49, s5, 3
    s_add_u32 s48, s12, s49
    s_lshl_b32 s49, s3, 2
    s_add_u32 s48, s48, s49
    s_add_u32 s48, s48, {WS_F}
    v_mov_b32 v2, s50
    v_mov_b32 v7, 0
    s_mov_b64 exec, 1
    buffer_store_dword v2, v7, s[8:11], s48 offen sc1
    s_mov_b64 exec, -1
    s_branch L_G
    """)
    a.label("L_A3")
    a(f"""
    v_mov_b32 v4, -1
    v_mov_b32 v5, -1
    v_mov_b32 v6, -1
    v_mov_b32 v7, -1
    v_lshlrev_b32 v2, 3, v0
    s_lshl_b32 s49, s5, 9
    s_add_u32 s48, s12, s49
    s_add_u32 s48, s48, {WS_OB}
    buffer_store_dwordx2 v[4:5], v2, s[8:11], s48 offen sc1
    v_and_b32 v2, 31, v0
    v_lshlrev_b32 v2, 4, v2
    v_lshrrev_b32 v3, 5, v0
    s_cmp_ge_u32 s5, 5
    s_cbranch_scc1 L_A3d
    s_mul_i32 s48, s4, 5120
    s_lshl_b32 s49, s5, 9
    s_add_u32 s48, s48, s49
    s_add_u32 s48, s48, {WS_T}
    s_movk_i32 s49, 2560
    s_branch L_A3s
    """)
    a.label("L_A3d")
    a(f"""
    s_cmp_ge_u32 s4, 27
    s_cbranch_scc1 L_A3n
    s_mul_i32 s48, s4, 2560
    s_sub_u32 s49, s5, 5
    s_lshl_b32 s49, s49, 10
    s_add_u32 s48, s48, s49
    s_add_u32 s48, s48, {WS_T+64*2560}
    s_cmp_eq_u32 s5, 7
    s_cselect_b32 s49, 0, 512
    """)
    a.label("L_A3s")
    a(f"""
    v_mad_u32_u24 v2, v3, s49, v2
    buffer_store_dwordx4 v[4:7], v2, s[8:11], s48 offen sc1
    """)
    a.label("L_A3n")
    a(f"""
    s_lshl_b32 s49, s5, 3
    s_add_u32 s48, s12, s49
    s_add_u32 s48, s48, {WS_ML}
    v_mov_b32 v3, 0
    s_mov_b64 exec, 1
    buffer_store_dwordx2 v[4:5], v3, s[8:11], s48 offen sc1
    s_waitcnt vmcnt(0) lgkmcnt(0)
    s_mul_i32 s50, s50, 0x9e3779b1
    s_add_u32 s50, s50, 0x7f4a7c15
    s_lshl_b32 s48, s4, 5
    s_lshl_b32 s49, s5, 2
    s_add_u32 s48, s48, s49
    s_add_u32 s48, s48, {WS_R}
    v_mov_b32 v2, s50
    buffer_store_dword v2, v3, s[8:11], s48 offen sc1
    s_mov_b64 exec, -1
    s_branch L_G
    """)
    a.label("L_A2")
    a(f"""
    s_add_u32 s52, s12, {WS_F}
    s_add_u32 s53, s12, {WS_OA}
    s_movk_i32 s54, {WS_R}
    s_mov_b32 s58, {SPIN}
    s_waitcnt lgkmcnt(0)
    s_mul_i32 s50, s50, 0x9e3779b1
    s_add_u32 s50, s50, 0x7f4a7c15
    s_mov_b32 s51, s50
    s_sleep {a2first}
    """)
    a.label("L_A2p")
    a(f"""
    s_sleep {a2sleep}
    s_load_dwordx16 s[64:79], s[8:9], s52 glc
    s_sub_u32 s58, s58, 1
    s_cbranch_scc1 L_A2g
    s_waitcnt lgkmcnt(0)
    """)
    for k in range(8): a(f"s_cmp_eq_u64 s[{64+2*k}:{65+2*k}], s[50:51]\ns_cbranch_scc0 L_A2p")
    a.label("L_A2g")
    a("s_waitcnt lgkmcnt(0)")
    stamp(3)
    for k in range(4): a(f"buffer_load_dwordx4 v[{24+4*k}:{27+4*k}], v1, s[8:11], s53 offen offset:{1024*k} sc1")
    a(f"s_mov_b32 s58, {SPIN}")
    a.label("L_A2r")
    a(f"""
    buffer_load_dwordx4 v[40:43], v1, s[8:11], s54 offen sc1
    s_sub_u32 s58, s58, 1
    s_cbranch_scc1 L_A2c
    s_waitcnt vmcnt(0)
    v_xor_b32 v40, s50, v40
    v_xor_b32 v41, s50, v41
    v_xor_b32 v42, s50, v42
    v_xor_b32 v43, s50, v43
    v_or3_b32 v40, v40, v41, v42
    v_or_b32 v40, v40, v43
    v_cmp_ne_u32 vcc, 0, v40
    s_cbranch_vccnz L_A2r
    """)
    a.label("L_A2c")
    a("s_waitcnt vmcnt(0)")
    for e in range(4): a(f"v_add_f32 v{24+e}, v{24+e}, v{28+e}\nv_add_f32 v{32+e}, v{32+e}, v{36+e}")
    for e in range(4): a(f"v_add_f32 v{24+e}, v{24+e}, v{32+e}")
    a(f"""
    v_cvt_pk_bf16_f32 v28, v24, v25
    v_cvt_pk_bf16_f32 v29, v26, v27
    v_lshlrev_b32 v2, 3, v0
    s_mov_b32 s48, -1
    s_mov_b32 s49, 0
    s_mov_b64 exec, s[48:49]
    ds_write_b64 v2, v[28:29] offset:{L_Q}
    s_mov_b64 exec, -1
    """)
    for e in range(4): a(f"v_cvt_pk_bf16_f32 v{24+e}, 0, v{24+e}")
    for e in range(4): a(f"v_mov_b32 v{28+e}, v{24+e}")
    for e in range(4): a(f"v_permlane16_swap_b32 v{24+e}, v{28+e}")
    for e in range(4): a(f"v_mul_f32 v{32+e}, 0xbfb8aa3b, v{24+e}")
    for e in range(4): a(f"v_exp_f32 v{32+e}, v{32+e}")
    for e in range(4): a(f"v_add_f32 v{32+e}, 1.0, v{32+e}")
    for e in range(4): a(f"v_rcp_f32 v{32+e}, v{32+e}")
    for e in range(4): a(f"v_mul_f32 v{32+e}, v{24+e}, v{32+e}")
    for e in range(4): a(f"v_cvt_pk_bf16_f32 v{32+e}, 0, v{32+e}")
    for e in range(4): a(f"v_mul_f32 v{32+e}, v{32+e}, v{28+e}")
    a(f"""
    v_cvt_pk_bf16_f32 v28, v32, v33
    v_cvt_pk_bf16_f32 v29, v34, v35
    s_mov_b32 s48, 0
    s_mov_b32 s49, 0xffff
    v_mov_b32 v3, s50
    v_mov_b32 v4, 1
    v_mov_b32 v7, 0
    s_mov_b64 exec, s[48:49]
    ds_write_b64 v2, v[28:29] offset:{L_H-256}
    s_mov_b64 exec, 1
    ds_write_b32 v7, v3 offset:{L_TAG}
    ds_write_b32 v7, v4 offset:{L_QF}
    s_mov_b64 exec, -1
    """)
    stamp(4)
    if stamps: flush_stamps([3, 4])
    a.label("L_G")
    if stamps:
        a("s_cmp_lg_u32 s3, 0\ns_cbranch_scc1 L_gs0")
        flush_stamps([0, 1, 2])
        a("s_waitcnt vmcnt(0)")
        a.label("L_gs0")
    GW, GG, GP = 24, 56, 72
    a(f"""
    s_waitcnt vmcnt(0)
    s_setprio 0
    v_lshrrev_b32 v3, 2, v0
    v_and_b32 v4, 3, v0
    v_lshlrev_b32 v5, 4, v4
    s_lshl_b32 s48, s3, 6
    s_movk_i32 s49, 10240
    s_mov_b32 s43, 0x20000
    v_bfe_u32 v6, v0, 2, 3
    v_lshl_add_u32 v10, v4, 3, v6
    v_lshlrev_b32 v10, 2, v10
    v_lshrrev_b32 v2, 5, v0
    s_lshl_b32 s57, s3, 7
    s_cmp_ge_u32 s5, 5
    s_cbranch_scc1 L_Gd
    s_mov_b32 s40, s24
    s_mov_b32 s41, s25
    s_mov_b32 s42, {4096*1280}
    v_mad_u32_u24 v8, v3, s49, v5
    s_mul_i32 s52, s4, {128*1280}
    s_lshl_b32 s53, s5, 8
    s_add_u32 s52, s52, s53
    s_mul_i32 s54, s4, 5120
    s_lshl_b32 s53, s5, 9
    s_add_u32 s54, s54, s53
    s_add_u32 s54, s54, {WS_T}
    s_movk_i32 s55, 2560
    s_branch L_Gl
    """)
    a.label("L_Gd")
    a(f"""
    s_cmp_ge_u32 s4, 27
    s_cbranch_scc1 L_end2
    s_mov_b32 s40, s32
    s_mov_b32 s41, s33
    s_mov_b32 s42, {1728*1280}
    v_mad_u32_u24 v8, v6, s49, v5
    s_mov_b32 s54, 0x800000
    s_cmp_eq_u32 s5, 7
    s_cselect_b32 s53, s54, 256
    s_cselect_b32 s55, s54, 512
    v_mad_u32_u24 v8, v2, s53, v8
    s_mul_i32 s52, s4, {64*1280}
    s_sub_u32 s53, s5, 5
    s_lshl_b32 s54, s53, 9
    s_add_u32 s52, s52, s54
    s_mul_i32 s54, s4, 2560
    s_lshl_b32 s53, s53, 10
    s_add_u32 s54, s54, s53
    s_add_u32 s54, s54, {WS_T+64*2560}
    """)
    a.label("L_Gl")
    a(f"""
    s_add_u32 s52, s52, s48
    s_add_u32 s53, s52, 5120
    s_add_u32 s57, s57, s54
    v_mad_u32_u24 v10, v2, s55, v10
    s_mov_b32 s44, s8
    s_mov_b32 s45, s9
    s_mov_b32 s46, {T_END}
    """)
    for i in range(8):
        a(f"buffer_load_dwordx4 v[{GW+4*i}:{GW+4*i+3}], v8, s[40:43], s{52+i//4} offen offset:{(i%4)*1280} nt")
    a("s_setprio 3")
    stamp(8)
    a("s_mov_b32 s60, 0x05040100\ns_mov_b32 s61, 0x07060302")
    for e in range(8): a(f"v_mov_b32 v{ACC+e}, 0")
    a("v_lshlrev_b32 v9, 9, v4\nv_lshl_add_u32 v9, v3, 5, v9\nv_lshlrev_b32 v6, 4, v6")
    lds_spin(L_QF, 1)
    a(f"""
    s_cmp_lt_u32 s5, 5
    s_cbranch_scc1 L_Gm
    ds_read_b128 v[{GP}:{GP+3}], v6 offset:{L_H}
    s_waitcnt vmcnt(0) lgkmcnt(0)
    s_branch L_Gw
    """)
    a.label("L_Gm")
    a(f"""
    s_add_u32 s52, s12, {WS_ML}
    s_add_u32 s53, s12, {WS_OB}
    s_mov_b32 s58, {SPIN}
    """)
    def gather():
        for k, off in enumerate((0, 16, 2048, 2064)):
            a(f"buffer_load_dwordx4 v[{GG+4*k}:{GG+4*k+3}], v9, s[8:11], s53 offen offset:{off} sc1")
    a("v_lshlrev_b32 v6, 3, v4\ns_cmp_eq_u32 s3, 0\ns_cbranch_scc1 L_Gmp")
    lds_spin(L_WF, 1, sleep=1)
    a(f"ds_read_b64 v[12:13], v6 offset:{L_W}\ns_waitcnt lgkmcnt(0)\ns_branch L_Gg")
    a.label("L_Gmp")
    a(f"""
    s_sleep {mlsleep}
    s_load_dwordx16 s[64:79], s[8:9], s52 glc
    s_sub_u32 s58, s58, 1
    s_cbranch_scc1 L_Gmx
    s_waitcnt lgkmcnt(0)
    s_max_u32 s48, s64, s65
    """)
    for k in range(2, 16): a(f"s_max_u32 s48, s48, s{64+k}")
    a("s_cmp_eq_u32 s48, -1\ns_cbranch_scc1 L_Gmp")
    a.label("L_Gmx")
    a(f"s_waitcnt lgkmcnt(0)")
    a("v_mov_b32 v2, s64")
    for p in range(1, 8): a(f"v_max_f32 v2, s{64+2*p}, v2")
    for p in range(8): a(f"v_sub_f32 v{80+p}, s{64+2*p}, v2")
    for p in range(8): a(f"v_exp_f32 v{80+p}, v{80+p}")
    a("v_mul_f32 v3, s65, v80")
    for p in range(1, 8): a(f"v_fmac_f32 v3, s{65+2*p}, v{80+p}")
    a(f"""
    v_rcp_f32 v3, v3
    s_mov_b32 s62, 0xaaaaaaaa
    s_mov_b32 s63, 0xaaaaaaaa
    s_mov_b32 s48, 0xcccccccc
    s_mov_b32 s49, 0xcccccccc
    v_cndmask_b32 v80, v80, v81, s[62:63]
    v_cndmask_b32 v82, v82, v83, s[62:63]
    v_cndmask_b32 v84, v84, v85, s[62:63]
    v_cndmask_b32 v86, v86, v87, s[62:63]
    v_cndmask_b32 v12, v80, v82, s[48:49]
    v_cndmask_b32 v13, v84, v86, s[48:49]
    v_mul_f32 v12, v12, v3
    v_mul_f32 v13, v13, v3
    v_mov_b32 v2, 1
    s_mov_b64 exec, 15
    ds_write_b64 v6, v[12:13] offset:{L_W}
    s_mov_b64 exec, 1
    ds_write_b32 v7, v2 offset:{L_WF}
    s_mov_b64 exec, -1
    """)
    a.label("L_Gg")
    a(f"s_mov_b32 s58, {SPIN}")
    gather()
    stamp(9)
    a.label("L_Gw")
    a("s_waitcnt vmcnt(4)")
    for k in range(4):
        for t in range(4):
            lo, hi = GW + 8 * k + t, GW + 8 * k + 4 + t
            a(f"v_perm_b32 v{88+4*k+t}, v{hi}, v{lo}, s61\nv_perm_b32 v{lo}, v{hi}, v{lo}, s60")
    a("s_cmp_ge_u32 s5, 5\ns_cbranch_scc1 L_Gdot\ns_branch L_Gchk")
    a.label("L_Gre")
    gather()
    a.label("L_Gchk")
    a(f"""
    s_sub_u32 s58, s58, 1
    s_waitcnt vmcnt(0)
    s_cbranch_scc1 L_Gc
    v_max3_u32 v2, v{GG}, v{GG+1}, v{GG+2}
    v_max3_u32 v3, v{GG+3}, v{GG+4}, v{GG+5}
    v_max3_u32 v4, v{GG+6}, v{GG+7}, v{GG+8}
    v_max3_u32 v5, v{GG+9}, v{GG+10}, v{GG+11}
    v_max3_u32 v6, v{GG+12}, v{GG+13}, v{GG+14}
    v_max3_u32 v2, v2, v3, v{GG+15}
    v_max3_u32 v4, v4, v5, v6
    v_max_u32 v2, v2, v4
    v_cmp_eq_u32 vcc, -1, v2
    s_cbranch_vccnz L_Gre
    """)
    a.label("L_Gc")
    stamp(10)
    for k in range(8): a(f"v_mul_f32 v{GG+k}, v12, v{GG+k}")
    for k in range(8): a(f"v_fmac_f32 v{GG+k}, v13, v{GG+8+k}")
    for k in range(8): a(f"v_add_f32_dpp v{GG+k}, v{GG+k}, v{GG+k} quad_perm:[1,0,3,2] row_mask:0xf bank_mask:0xf")
    for k in range(8): a(f"v_add_f32_dpp v{GG+k}, v{GG+k}, v{GG+k} quad_perm:[2,3,0,1] row_mask:0xf bank_mask:0xf")
    for k in range(4): a(f"v_cvt_pk_bf16_f32 v{GP+k}, v{GG+2*k}, v{GG+2*k+1}")
    a.label("L_Gdot")
    for k in range(4):
        for t in range(4):
            a(f"v_dot2c_f32_bf16 {A(2*t)}, v{GW+8*k+t}, v{GP+k}\nv_dot2c_f32_bf16 {A(2*t+1)}, v{88+4*k+t}, v{GP+k}")
    for e in range(4): a(f"v_permlane16_swap_b32 {A(e)}, {A(e+4)}")
    for e in range(4): a(f"v_add_f32 {A(e)}, {A(e)}, {A(e+4)}")
    for e in range(2): a(f"v_add_f32_dpp {A(e)}, {A(e)}, {A(e)} row_ror:8 row_mask:0xf bank_mask:0x3")
    for e in range(2): a(f"v_add_f32_dpp {A(e)}, {A(e+2)}, {A(e+2)} row_ror:8 row_mask:0xf bank_mask:0xc")
    a(f"""
    v_add_f32_dpp {A(0)}, {A(0)}, {A(0)} row_shl:4 row_mask:0xf bank_mask:0x5
    v_add_f32_dpp {A(0)}, {A(1)}, {A(1)} row_shr:4 row_mask:0xf bank_mask:0xa
    buffer_store_dword {A(0)}, v10, s[44:47], s57 offen sc1
    """)
    if stamps:
        stamp(11)
        a("s_cmp_lg_u32 s3, 0\ns_cbranch_scc1 L_end2")
        flush_stamps([8, 9, 10, 11])
    a.label("L_end2")
    a("s_endpgm")
    nv = 152
    a.raw('.section .rodata,"a"'); a.raw(".p2align 6"); a.raw(f".amdhsa_kernel {KN}")
    a.raw(f"  .amdhsa_next_free_vgpr {nv}"); a.raw("  .amdhsa_next_free_sgpr 96"); a.raw(f"  .amdhsa_accum_offset {(nv+3)//4*4}")
    a.raw("  .amdhsa_group_segment_fixed_size 0"); a.raw("  .amdhsa_kernarg_size 96"); a.raw("  .amdhsa_user_sgpr_count 2")
    a.raw("  .amdhsa_user_sgpr_kernarg_segment_ptr 1"); a.raw("  .amdhsa_system_sgpr_workgroup_id_x 1"); a.raw(".end_amdhsa_kernel")
    open(path, "w").write(a.text())

if __name__ == "__main__":
    gen("k1.s")
    gen("k1s.s", stamps=True)
```

```python
import sys
sys.path.insert(0, "gen")
from asmlib import Asm
KN = "recurrent_scan__sliding_block_cached__swiglu_ffn__decode_kernel"
HDR = open("recurrent_scan__sliding_block_cached__swiglu_ffn__decode.s.ref").read().split("; Override launch")[0]

GS = 3 * 4096 + 256
WS_E, WS_G = 0, 0x1000
WS_OA, WS_OB, WS_F = WS_G, WS_G + 4096, WS_G + 9216
OBS = 640
WS_T = 0x80000
TS = 5120
T_END = WS_T + 91 * TS
L_QF, L_C1, L_C2, L_TAG, L_C3, L_CA, L_IS, L_POST = 0, 4, 8, 12, 16, 20, 24, 64
L_Q, L_H, L_AACC, L_OACC = 256, 512, 1024, 2048
L_GO = L_AACC
LDS_BYTES = 6144
LOG2E = "0x3fb8aa3b"
SCALE = "0x3db504f3"

def gen(path, stamps=False, rotmul=5, a2sleep=8, sset=0, cpf=True, gwait=8, perwave=False, depth=4, qpos=8, gdepth=4,
        blk=1, xmap=2, SPIN=20000, forcemixed=False, ispos=31, zfirst=True, psleep=0, pfl='sc1', gpre=0, gpd=1, zwait=0, no=''):
    a = Asm()
    a.raw(HDR.rstrip())
    a.raw(f"; @launch grid=(256,1,1) block=(768,1,1) lds={LDS_BYTES}")
    if perwave: a.raw("; nstamp=3072")
    a.raw('.amdgcn_target "amdgcn-amd-amdhsa--gfx950"')
    a.raw(".text"); a.raw(f".globl {KN}"); a.raw(".p2align 8"); a.raw(f".type {KN},@function"); a.raw(f"{KN}:")
    def stamp(i, ss=0):
        if stamps and (ss == sset or (ss == 0 and (i < 8 or i == 13 or sset == 3))):
            a(f"s_memrealtime s[96:97]\ns_waitcnt lgkmcnt(0)\ns_mov_b32 s{80+i}, s96\ns_bitset1_b32 s98, {i}")
    def flush_stamps(mask):
        if not stamps: return
        a("s_mov_b64 exec, -1\nv_lshlrev_b32 v154, 3, v0\nv_mov_b32 v153, 0")
        if perwave:
            a("s_mul_i32 s59, s2, 12\ns_add_u32 s59, s59, s3\ns_lshl_b32 s59, s59, 7\ns_add_u32 s59, s59, 0x20000000")
            mask = "0xffff"
        else:
            a("s_lshl_b32 s59, s2, 7\ns_add_u32 s59, s59, 0x20000000")
        for i in range(16): a(f"v_writelane_b32 v152, s{80+i}, {i}")
        L = a.newlabel("Lfl")
        a(f"s_and_b32 s98, s98, {mask}\ns_mov_b32 s99, 0\ns_cbranch_scc0 {L}\ns_mov_b64 exec, s[98:99]\nbuffer_store_dwordx2 v[152:153], v154, s[8:11], s59 offen")
        a.label(L)
    def allreduce(op, v, t):
        for r in (8, 4, 2, 1):
            a(f"{op}_dpp {v}, {v}, {v} row_ror:{r} row_mask:0xf bank_mask:0xf")
        a(f"v_mov_b32 {t}, {v}\nv_permlane16_swap_b32 {t}, {v}\n{op} {v}, {t}, {v}")
        a(f"v_mov_b32 {t}, {v}\nv_permlane32_swap_b32 {t}, {v}\n{op} {v}, {t}, {v}")
    def lds_spin(off, val, sleep=2):
        L = a.newlabel("Lsp"); X = a.newlabel("Lspx")
        a(f"s_mov_b32 s58, {SPIN}")
        a.label(L)
        a(f"ds_read_b32 v2, v7 offset:{off}\ns_waitcnt lgkmcnt(0)\nv_readfirstlane_b32 s48, v2\ns_cmp_ge_u32 s48, {val}\ns_cbranch_scc1 {X}")
        a(f"s_sleep {sleep}\ns_sub_u32 s58, s58, 1\ns_cbranch_scc0 {L}")
        a.label(X)
    def mstore(text):
        L = a.newlabel("Lms"); X = a.newlabel("Lmx")
        a(f"s_cmp_eq_u32 s7, 1\ns_cbranch_scc0 {L}\n{text}\ns_branch {X}")
        a.label(L)
        a(f"{text} sc1")
        a.label(X)
    ACC = 16
    A = lambda e: f"v{ACC+e}"

    if stamps:
        a("s_mov_b32 s98, 0")
        stamp(0)
    a(f"""
    s_cmp_ge_u32 s2, 256
    s_cbranch_scc1 L_end
    s_load_dwordx16 s[16:31], s[0:1], 0
    s_load_dwordx4 s[32:35], s[0:1], 64
    s_load_dwordx2 s[8:9], s[0:1], 88
    """)
    if cpf:
        a("v_lshlrev_b32 v2, 7, v0\ns_getpc_b64 s[48:49]")
        a.label("L_pc")
        a(f"""
        v_cmp_gt_u32 vcc, L_last-L_pc, v2
        s_and_saveexec_b64 s[50:51], vcc
        s_cbranch_execz L_nocpf
        global_load_dword v151, v2, s[48:49]
        """)
        a.label("L_nocpf")
        a("s_mov_b64 exec, -1")
    a(f"""
    v_lshrrev_b32 v1, 6, v0
    v_and_b32 v0, 63, v0
    v_readfirstlane_b32 s3, v1
    v_lshlrev_b32 v1, 4, v0
    v_mov_b32 v7, 0
    """)
    if xmap == 2:
        a("s_bfe_u32 s5, s2, 0x30003\ns_lshr_b32 s4, s2, 6\ns_lshl_b32 s4, s4, 3\ns_and_b32 s6, s2, 7\ns_add_u32 s4, s4, s6")
    else:
        a("s_lshr_b32 s4, s2, 3\ns_add_u32 s5, s2, s4\ns_and_b32 s5, s5, 7")
    a(f"""
    s_mov_b32 s43, 0x20000
    s_mov_b32 s47, 0x20000
    s_mov_b32 s10, 0x40000000
    s_mov_b32 s11, 0x20000
    s_mul_i32 s12, s4, {GS}
    s_cmp_ge_u32 s3, 4
    s_cbranch_scc1 L_KV
    """)
    W0 = 24
    a(f"""
    s_setprio 3
    v_mov_b32 v4, 0
    v_mov_b32 v5, 0
    v_mov_b32 v6, 0
    s_and_b32 s7, s5, 1
    ds_write_b128 v1, v[4:7]
    ds_write_b128 v1, v[4:7] offset:1024
    s_and_b32 s13, s3, 1
    s_and_b32 s14, s5, 6
    s_add_u32 s14, s14, s13
    s_mul_i32 s14, s14, 80
    v_mul_u32_u24 v2, 20, v0
    v_lshrrev_b32 v3, 3, v0
    v_mul_u32_u24 v4, 20, v3
    v_and_b32 v5, 7, v0
    v_lshlrev_b32 v6, 4, v5
    s_lshl_b32 s48, s14, 1
    s_mov_b32 s46, 1280
    s_lshl_b32 s53, s4, 7
    s_lshl_b32 s54, s7, 7
    s_add_u32 s54, s54, s53
    s_add_u32 s54, s54, s53
    s_movk_i32 s52, 8192
    s_cmp_ge_u32 s3, 2
    s_cselect_b32 s52, 3456, s52
    s_cselect_b32 s53, s53, s54
    s_mul_i32 s42, s52, 640
    s_mul_i32 s49, s52, 10
    s_mul_i32 s54, s14, s52
    s_add_u32 s53, s53, s54
    v_mad_u32_u24 v6, v3, s49, v6
    s_cmp_ge_u32 s4, 27
    s_cselect_b32 s15, 2, 4
    s_cmp_eq_u32 s7, 0
    s_waitcnt lgkmcnt(0)
    s_cselect_b32 s40, s28, s30
    s_cselect_b32 s41, s29, s31
    s_cmp_ge_u32 s3, 2
    s_cselect_b32 s40, s40, s22
    s_cselect_b32 s41, s41, s23
    s_mov_b32 s44, s16
    s_mov_b32 s45, s17
    s_cmp_ge_u32 s3, s15
    s_cbranch_scc1 L_Anoload
    buffer_load_dwordx4 v[104:107], v2, s[44:47], 0 offen
    buffer_load_dword v108, v2, s[44:47], 0 offen offset:16
    buffer_load_dwordx4 v[110:113], v4, s[44:47], s48 offen
    buffer_load_dword v114, v4, s[44:47], s48 offen offset:16
    """)
    for i in range(10):
        a(f"buffer_load_dwordx4 v[{W0+4*i}:{W0+4*i+3}], v6, s[40:43], s53 offen nt")
        if i < 9: a("s_add_u32 s53, s53, s52")
    a.label("L_Anoload")
    a("s_barrier")
    stamp(8, 1)
    a(f"""
    s_load_dword s50, s[8:9], {WS_E}
    v_lshl_add_u32 v9, v5, 3, v3
    v_lshlrev_b32 v9, 3, v9
    v_lshlrev_b32 v8, 2, v0
    s_cmp_ge_u32 s3, s15
    s_cbranch_scc1 L_Adone
    s_mov_b32 s56, 0xffff0000
    s_mov_b32 s60, 0x05040100
    s_mov_b32 s61, 0x07060302
    s_lshl_b32 s49, s3, 8
    v_add_u32 v10, s49, v8
    """)
    for e in range(8): a(f"v_mov_b32 v{ACC+e}, 0")
    a("s_waitcnt vmcnt(12)")
    stamp(9, 1)
    for k in range(5):
        a(f"v_lshlrev_b32 v{120+2*k}, 16, v{104+k}\nv_and_b32 v{121+2*k}, s56, v{104+k}")
    a("v_add_f32 v2, v120, v121")
    for k in range(2, 10): a(f"v_add_f32 v2, v2, v{120+k}")
    allreduce("v_add_f32", "v2", "v4")
    a("v_mul_f32 v2, 0x3acccccd, v2")
    for k in range(10): a(f"v_sub_f32 v{120+k}, v{120+k}, v2")
    a("v_mul_f32 v5, v120, v120")
    for k in range(1, 10): a(f"v_fmac_f32 v5, v{120+k}, v{120+k}")
    allreduce("v_add_f32", "v5", "v4")
    a(f"""
    v_mul_f32 v5, 0x3acccccd, v5
    v_cvt_pk_bf16_f32 v2, 0, v2
    v_cvt_pk_bf16_f32 v5, 0, v5
    v_add_f32 v5, 0x3727c5ac, v5
    v_cvt_pk_bf16_f32 v5, 0, v5
    v_sqrt_f32 v5, v5
    v_cvt_pk_bf16_f32 v5, 0, v5
    v_rcp_f32 v5, v5
    s_waitcnt vmcnt(10)
    """)
    for k in range(5):
        x = 110 + k
        a(f"""
        v_lshlrev_b32 v120, 16, v{x}
        v_and_b32 v121, s56, v{x}
        v_sub_f32 v120, v120, v2
        v_sub_f32 v121, v121, v2
        v_cvt_pk_bf16_f32 v120, 0, v120
        v_cvt_pk_bf16_f32 v121, 0, v121
        v_mul_f32 v120, v120, v5
        v_mul_f32 v121, v121, v5
        v_cvt_pk_bf16_f32 v{130+k}, v120, v121
        """)
    stamp(10, 1)
    for k in range(5):
        a(f"s_waitcnt vmcnt({8-2*k})")
        if k == 4: stamp(11, 1)
        for t in range(4):
            lo, hi = W0 + 8 * k + t, W0 + 8 * k + 4 + t
            a(f"v_perm_b32 v{140+t}, v{hi}, v{lo}, s61\nv_perm_b32 v{lo}, v{hi}, v{lo}, s60")
        for t in range(4):
            lo = W0 + 8 * k + t
            a(f"v_dot2c_f32_bf16 {A(2*t)}, v{lo}, v{130+k}\nv_dot2c_f32_bf16 {A(2*t+1)}, v{140+t}, v{130+k}")
    for e in range(4): a(f"v_permlane32_swap_b32 {A(e)}, {A(e+4)}")
    for e in range(4): a(f"v_add_f32 {A(e)}, {A(e)}, {A(e+4)}")
    for e in range(2): a(f"v_permlane16_swap_b32 {A(e)}, {A(e+2)}")
    for e in range(2): a(f"v_add_f32 {A(e)}, {A(e)}, {A(e+2)}")
    a(f"""
    v_add_f32_dpp {A(0)}, {A(0)}, {A(0)} row_ror:8 row_mask:0xf bank_mask:0x3
    v_add_f32_dpp {A(0)}, {A(1)}, {A(1)} row_ror:8 row_mask:0xf bank_mask:0xc
    ds_write_b32 v10, {A(0)} offset:{L_AACC}
    """)
    a.label("L_Adone")
    a(f"""
    v_mov_b32 v4, 1
    s_mov_b64 exec, 1
    ds_add_rtn_u32 v2, v7, v4 offset:{L_CA}
    s_mov_b64 exec, -1
    ds_read2st64_b32 v[24:25], v8 offset0:{L_AACC//256} offset1:{L_AACC//256+2}
    ds_read2st64_b32 v[26:27], v8 offset0:{L_AACC//256+1} offset1:{L_AACC//256+3}
    s_lshl_b32 s49, s5, 9
    s_add_u32 s53, s12, {WS_OA}
    s_add_u32 s54, s53, s49
    s_mul_i32 s55, s5, {OBS}
    s_add_u32 s55, s55, s12
    s_add_u32 s55, s55, {WS_OB}
    v_mov_b32 v44, -1
    v_mov_b32 v45, -1
    v_mov_b32 v46, -1
    v_mov_b32 v47, -1
    s_mov_b32 s62, -1
    s_movk_i32 s63, 0xff
    s_waitcnt lgkmcnt(0)
    v_readfirstlane_b32 s48, v2
    v_add_f32 v2, v24, v26
    v_add_f32 v3, v25, v27
    s_cmp_lg_u32 s48, 3
    s_cbranch_scc1 L_G
    buffer_store_dwordx2 v[2:3], v9, s[8:11], s54 offen
    s_mov_b64 exec, s[62:63]
    buffer_store_dwordx4 v[44:47], v1, s[8:11], s55 offen
    s_mov_b64 exec, -1
    """)
    stamp(1)
    a(f"""
    s_getreg_b32 s56, hwreg(HW_REG_XCC_ID, 0, 4)
    s_mul_i32 s50, s50, 0x9e3779b1
    s_add_u32 s50, s50, 0x7f4a7c15
    s_mov_b32 s51, s50
    {"s_mov_b32 s56, s5" if forcemixed else ""}
    s_add_u32 s56, s56, s50
    s_mov_b32 s57, s56
    s_mov_b32 s6, s56
    s_add_u32 s52, s12, {WS_F}
    s_lshl_b32 s49, s5, 2
    s_add_u32 s49, s49, s52
    s_mov_b32 s58, {SPIN}
    s_waitcnt vmcnt(0)
    s_atomic_swap s6, s[8:9], s49
    """)
    stamp(2)
    a.label("L_A2p")
    a(f"""
    s_sleep {a2sleep}
    s_load_dwordx8 s[64:71], s[8:9], s52 glc
    s_sub_u32 s58, s58, 1
    s_cbranch_scc1 L_A2g
    s_waitcnt lgkmcnt(0)
    """)
    for k in range(8): a(f"s_sub_u32 s48, s{64+k}, s50\ns_cmp_ge_u32 s48, 16\ns_cbranch_scc1 L_A2p")
    for k in range(4): a(f"s_cmp_eq_u64 s[{64+2*k}:{65+2*k}], s[56:57]\ns_cbranch_scc0 L_Amix")
    a.label("L_A2g")
    stamp(3)
    for k in range(4): a(f"buffer_load_dwordx4 v[{24+4*k}:{27+4*k}], v1, s[8:11], s53 offen offset:{1024*k} nt")
    a.label("L_A2s")
    a("s_waitcnt vmcnt(0) lgkmcnt(0)")
    for e in range(4): a(f"v_add_f32 v{24+e}, v{24+e}, v{28+e}\nv_add_f32 v{32+e}, v{32+e}, v{36+e}")
    for e in range(4): a(f"v_add_f32 v{24+e}, v{24+e}, v{32+e}")
    a(f"""
    v_cvt_pk_bf16_f32 v28, v24, v26
    v_cvt_pk_bf16_f32 v25, 0, v25
    v_cvt_pk_bf16_f32 v27, 0, v27
    ds_write_b32 v8, v28 offset:{L_Q}
    v_mov_b32 v29, v25
    v_mov_b32 v30, v27
    v_permlane32_swap_b32 v25, v29
    v_permlane32_swap_b32 v27, v30
    v_mul_f32 v32, 0xbfb8aa3b, v25
    v_mul_f32 v33, 0xbfb8aa3b, v27
    v_exp_f32 v32, v32
    v_exp_f32 v33, v33
    v_add_f32 v32, 1.0, v32
    v_add_f32 v33, 1.0, v33
    v_rcp_f32 v32, v32
    v_rcp_f32 v33, v33
    v_mul_f32 v32, v25, v32
    v_mul_f32 v33, v27, v33
    v_cvt_pk_bf16_f32 v32, 0, v32
    v_cvt_pk_bf16_f32 v33, 0, v33
    v_mul_f32 v32, v32, v29
    v_mul_f32 v33, v33, v30
    v_cvt_pk_bf16_f32 v28, v32, v33
    v_mov_b32 v3, s50
    ds_write_b32 v8, v28 offset:{L_H}
    s_mov_b64 exec, 1
    ds_write_b32 v7, v3 offset:{L_TAG}
    ds_write_b32 v7, v4 offset:{L_QF}
    s_mov_b64 exec, -1
    """)
    stamp(4)
    a.label("L_G")
    GW, GG, GP, GM, GO = 24, 56, 72, 64, 76
    a(f"""
    v_lshrrev_b32 v3, 3, v0
    v_and_b32 v4, 7, v0
    v_lshlrev_b32 v5, 4, v4
    s_movk_i32 s49, 10240
    v_mad_u32_u24 v8, v3, s49, v5
    v_lshrrev_b32 v10, 4, v0
    v_lshl_add_u32 v10, v4, 2, v10
    v_lshlrev_b32 v10, 4, v10
    s_cmp_ge_u32 s5, 5
    s_cbranch_scc1 L_Gd
    s_mov_b32 s40, s24
    s_mov_b32 s41, s25
    s_mov_b32 s42, {4096*1280}
    s_lshr_b32 s14, s3, 1
    s_lshl_b32 s48, s4, 1
    s_add_u32 s48, s48, s14
    s_lshl_b32 s49, s5, 1
    s_add_u32 s49, s49, s13
    s_mul_i32 s52, s48, {64*1280}
    s_mul_i32 s57, s48, {TS}
    s_add_u32 s57, s57, {WS_T}
    s_branch L_Gl
    """)
    a.label("L_Gd")
    a(f"""
    s_cmp_ge_u32 s4, 27
    s_cbranch_scc1 L_Gend
    s_sub_u32 s49, s5, 5
    s_lshl_b32 s49, s49, 2
    s_add_u32 s49, s49, s3
    s_cmp_ge_u32 s49, 10
    s_cbranch_scc1 L_Gend
    s_mov_b32 s40, s32
    s_mov_b32 s41, s33
    s_mov_b32 s42, {1728*1280}
    s_mul_i32 s52, s4, {64*1280}
    s_mul_i32 s57, s4, {TS}
    s_add_u32 s57, s57, {WS_T+64*TS}
    """)
    a.label("L_Gl")
    a(f"""
    s_lshl_b32 s48, s49, 7
    s_add_u32 s52, s52, s48
    s_add_u32 s53, s52, 5120
    s_lshl_b32 s48, s49, 9
    s_add_u32 s57, s57, s48
    s_mov_b32 s60, 0x05040100
    s_mov_b32 s61, 0x07060302
    s_mov_b32 s62, 0x00ff00ff
    s_mov_b32 s63, 0x00ff00ff
    s_add_u32 s54, s12, {WS_OB}
    s_lshl_b32 s55, s14, 8
    s_add_u32 s55, s55, s54
    v_lshrrev_b32 v2, 4, v0
    v_and_b32 v5, 15, v0
    v_mul_u32_u24 v11, {OBS}, v2
    v_lshl_add_u32 v9, v5, 4, v11
    v_lshlrev_b32 v6, 4, v3
    s_lshl_b32 s48, s3, 7
    v_add_u32 v14, s48, v6
    v_lshl_add_u32 v15, v5, 2, v2
    v_lshlrev_b32 v15, 1, v15
    v_add_u32 v15, s48, v15
    """)
    for e in range(8): a(f"v_mov_b32 v{ACC+e}, 0")
    for i in range(8):
        if i == gpre: lds_spin(L_IS, gwait, sleep=2)
        if i < gpre:
            if i >= gpd: a(f"s_waitcnt vmcnt({gpd-1})")
        elif gdepth and i - gpre >= gdepth: a(f"s_waitcnt vmcnt({gdepth-1})")
        a(f"buffer_load_dwordx4 v[{GW+4*i}:{GW+4*i+3}], v8, s[40:43], s{52+i//4} offen offset:{(i%4)*1280} nt")
    if gpre == 8: lds_spin(L_IS, gwait, sleep=2)
    stamp(8)
    if 'B' in no:
        a("s_waitcnt vmcnt(0)")
        stamp(9)
        a("s_branch L_Gend")
    def gather_o():
        for k in range(2):
            a(f"buffer_load_dwordx4 v[{GG+4*k}:{GG+4*k+3}], v9, s[8:11], s55 offen offset:{4*OBS*k} {pfl}")
    def gather_ml():
        for k in range(2):
            a(f"buffer_load_dwordx2 v[{GM+2*k}:{GM+2*k+1}], v11, s[8:11], s54 offen offset:{512+4*OBS*k} {pfl}")
    def perms():
        for k in range(4):
            for t in range(4):
                lo, hi = GW + 8 * k + t, GW + 8 * k + 4 + t
                a(f"v_perm_b32 v{88+4*k+t}, v{hi}, v{lo}, s61\nv_perm_b32 v{lo}, v{hi}, v{lo}, s60")
    a(f"""
    ds_read_b32 v{GO+1}, v7 offset:{L_TAG}
    ds_read_b32 v{GO+3}, v7 offset:{L_TAG}
    ds_read_b128 v[{GP}:{GP+3}], v6 offset:{L_H}
    s_mov_b32 s58, {SPIN}
    s_cmp_lt_u32 s5, 5
    s_cbranch_scc1 L_Gm
    s_waitcnt vmcnt(0)
    """)
    if zwait: lds_spin(L_C2, zwait, sleep=1)
    a("s_branch L_Gw")
    a.label("L_Gm")
    gather_ml()
    a("s_waitcnt vmcnt(2)")
    gather_o()
    a.label("L_Gw")
    stamp(5, 3)
    perms()
    stamp(7, 3)
    a("s_waitcnt vmcnt(2) lgkmcnt(0)\ns_cmp_ge_u32 s5, 5\ns_cbranch_scc1 L_Gdot\ns_branch L_Gmc")
    a.label("L_Gmr")
    if psleep: a(f"s_sleep {psleep}")
    gather_ml()
    a("s_waitcnt vmcnt(0)")
    a.label("L_Gmc")
    a(f"""
    s_sub_u32 s58, s58, 1
    s_cbranch_scc1 L_Gmx
    v_max3_u32 v2, v{GM}, v{GM+1}, v{GM+2}
    v_max_u32 v2, v2, v{GM+3}
    v_cmp_eq_u32 vcc, -1, v2
    s_cbranch_vccnz L_Gmr
    """)
    a.label("L_Gmx")
    stamp(14, 3)
    if sset == 3: a(f"s_sub_u32 s95, {SPIN}, s58\ns_mul_i32 s95, s95, 100\ns_add_u32 s95, s95, s80\ns_bitset1_b32 s98, 15")
    a(f"""
    v_max_f32 v2, v{GM}, v{GM+2}
    s_mov_b32 s58, {SPIN}
    v_mov_b32 v3, v2
    v_permlane16_swap_b32 v3, v2
    v_max_f32 v2, v3, v2
    v_mov_b32 v3, v2
    v_permlane32_swap_b32 v3, v2
    v_max_f32 v2, v3, v2
    v_sub_f32 v12, v{GM}, v2
    v_sub_f32 v13, v{GM+2}, v2
    v_exp_f32 v12, v12
    v_exp_f32 v13, v13
    v_mul_f32 v2, v12, v{GM+1}
    v_fmac_f32 v2, v13, v{GM+3}
    v_mov_b32 v3, v2
    v_permlane16_swap_b32 v3, v2
    v_add_f32 v2, v3, v2
    v_mov_b32 v3, v2
    v_permlane32_swap_b32 v3, v2
    v_add_f32 v2, v3, v2
    v_rcp_f32 v2, v2
    v_mul_f32 v12, v12, v2
    v_mul_f32 v13, v13, v2
    """)
    stamp(9)
    a("s_branch L_Gchk")
    a.label("L_Gre")
    if psleep: a(f"s_sleep {psleep}")
    gather_o()
    a.label("L_Gchk")
    a(f"""
    s_sub_u32 s58, s58, 1
    s_waitcnt vmcnt(0)
    s_cbranch_scc1 L_Gc
    v_max3_u32 v2, v{GG}, v{GG+1}, v{GG+2}
    v_max3_u32 v3, v{GG+3}, v{GG+4}, v{GG+5}
    v_max3_u32 v2, v2, v{GG+6}, v{GG+7}
    v_max_u32 v2, v2, v3
    v_cmp_eq_u32 vcc, -1, v2
    s_and_b64 exec, exec, vcc
    s_cbranch_execnz L_Gre
    """)
    a.label("L_Gc")
    a("s_mov_b64 exec, -1")
    stamp(10)
    if sset == 3: a(f"s_sub_u32 s86, {SPIN}, s58\ns_mul_i32 s86, s86, 100\ns_add_u32 s86, s86, s80\ns_bitset1_b32 s98, 6")
    for k in range(4): a(f"v_mul_f32 v{GG+k}, v12, v{GG+k}")
    for k in range(4): a(f"v_fmac_f32 v{GG+k}, v13, v{GG+4+k}")
    a(f"""
    v_permlane32_swap_b32 v{GG}, v{GG+2}
    v_permlane32_swap_b32 v{GG+1}, v{GG+3}
    v_add_f32 v{GG}, v{GG}, v{GG+2}
    v_add_f32 v{GG+1}, v{GG+1}, v{GG+3}
    v_permlane16_swap_b32 v{GG}, v{GG+1}
    v_add_f32 v{GG}, v{GG}, v{GG+1}
    v_cvt_pk_bf16_f32 v{GG}, v{GG}, v{GG}
    ds_write_b16 v15, v{GG} offset:{L_GO}
    ds_read_b128 v[{GP}:{GP+3}], v14 offset:{L_GO}
    s_waitcnt lgkmcnt(0)
    """)
    a.label("L_Gdot")
    for k in range(4):
        for t in range(4):
            a(f"v_dot2c_f32_bf16 {A(2*t)}, v{GW+8*k+t}, v{GP+k}\nv_dot2c_f32_bf16 {A(2*t+1)}, v{88+4*k+t}, v{GP+k}")
    for e in range(4): a(f"v_permlane32_swap_b32 {A(e)}, {A(e+4)}")
    for e in range(4): a(f"v_add_f32 {A(e)}, {A(e)}, {A(e+4)}")
    for e in range(2): a(f"v_permlane16_swap_b32 {A(e)}, {A(e+2)}")
    for e in range(2): a(f"v_add_f32 {A(e)}, {A(e)}, {A(e+2)}")
    a(f"""
    v_add_f32_dpp v{GO}, {A(0)}, {A(0)} row_ror:8 row_mask:0xf bank_mask:0xf
    v_add_f32_dpp v{GO+2}, {A(1)}, {A(1)} row_ror:8 row_mask:0xf bank_mask:0xf
    s_mov_b64 exec, s[62:63]
    {"" if 'T' in no else f"buffer_store_dwordx4 v[{GO}:{GO+3}], v10, s[8:11], s57 offen sc1"}
    """)
    stamp(11)
    if 'T' in no or 'R' in no: a("s_branch L_Gend")
    a(f"""
    s_sub_u32 s48, s5, 5
    s_cmp_ge_u32 s48, 2
    s_cbranch_scc1 L_Gend
    s_cmp_ge_u32 s4, 20
    s_cbranch_scc1 L_Gend
    s_mov_b64 exec, -1
    s_lshl_b32 s6, s4, 3
    s_add_u32 s6, s6, s49
    s_mov_b32 s40, s8
    s_mov_b32 s41, s9
    s_mov_b32 s42, {T_END}
    s_mov_b32 s44, s16
    s_mov_b32 s45, s17
    s_mov_b32 s46, 1280
    v_lshrrev_b32 v3, 1, v0
    v_and_b32 v4, 1, v0
    v_mul_u32_u24 v3, {TS}, v3
    v_lshl_add_u32 v8, v4, 4, v3
    s_lshl_b32 s48, s6, 5
    s_add_u32 s52, s48, {WS_T}
    s_add_u32 s53, s48, {WS_T+32*TS}
    s_add_u32 s54, s48, {WS_T+64*TS}
    v_lshrrev_b32 v3, 5, v0
    v_lshl_add_u32 v4, v4, 1, v3
    v_lshlrev_b32 v9, 1, v4
    s_lshl_b32 s55, s6, 3
    buffer_load_ushort v10, v9, s[44:47], s55 offen
    v_mov_b32 v32, 0
    v_mov_b32 v34, 0
    s_mov_b32 s44, s34
    s_mov_b32 s45, s35
    s_mov_b32 s58, {SPIN}
    s_mov_b32 s56, 3
    s_mov_b32 s57, 3
    s_mov_b32 exec_hi, 0x3fffff
    """)
    a.label("L_rz")
    a(f"""
    buffer_load_dwordx4 v[32:35], v8, s[40:43], s54 offen sc1
    s_sub_u32 s58, s58, 1
    s_waitcnt vmcnt(0)
    s_cbranch_scc1 L_rzx
    v_xor_b32 v2, v33, v{GO+1}
    v_bitop3_b32 v2, v35, v{GO+1}, v2 bitop3:0xbe
    v_cmp_ne_u32 vcc, 0, v2
    s_and_b64 exec, exec, vcc
    s_cbranch_execnz L_rz
    """)
    a.label("L_rzx")
    a(f"""
    s_mov_b64 exec, -1
    buffer_load_dwordx4 v[24:27], v8, s[40:43], s52 offen sc1
    buffer_load_dwordx4 v[28:31], v8, s[40:43], s53 offen sc1
    v_permlane32_swap_b32 v32, v34
    v_lshlrev_b32 v10, 16, v10
    v_add_f32 v32, v32, v34
    v_mov_b32 v33, v32
    v_permlane16_swap_b32 v32, v33
    v_add_f32 v32, v32, v33
    """)
    for r in (8, 4, 2): a(f"v_add_f32_dpp v32, v32, v32 row_ror:{r} row_mask:0xf bank_mask:0xf")
    a(f"""
    v_cvt_pk_bf16_f32 v32, 0, v32
    v_mul_f32 v2, 0xbfb8aa3b, v32
    v_exp_f32 v2, v2
    v_add_f32 v2, 1.0, v2
    v_rcp_f32 v2, v2
    v_mul_f32 v2, v32, v2
    v_cvt_pk_bf16_f32 v12, 0, v2
    s_mov_b32 s58, {SPIN}
    s_branch L_ryc
    """)
    a.label("L_ry")
    a(f"""
    buffer_load_dwordx4 v[24:27], v8, s[40:43], s52 offen sc1
    buffer_load_dwordx4 v[28:31], v8, s[40:43], s53 offen sc1
    """)
    a.label("L_ryc")
    a(f"""
    s_sub_u32 s58, s58, 1
    s_waitcnt vmcnt(0)
    s_cbranch_scc1 L_ryx
    v_xor_b32 v2, v25, v{GO+1}
    v_xor_b32 v3, v29, v{GO+1}
    v_bitop3_b32 v2, v27, v{GO+1}, v2 bitop3:0xbe
    v_bitop3_b32 v3, v31, v{GO+1}, v3 bitop3:0xbe
    v_or_b32 v2, v2, v3
    v_cmp_ne_u32 vcc, 0, v2
    s_and_b64 exec, exec, vcc
    s_cbranch_execnz L_ry
    """)
    a.label("L_ryx")
    a("s_mov_b64 exec, -1")
    stamp(12)
    a("""
    v_add_f32 v24, v24, v28
    v_add_f32 v26, v26, v30
    v_permlane32_swap_b32 v24, v26
    v_add_f32 v24, v24, v26
    v_mov_b32 v25, v24
    v_permlane16_swap_b32 v24, v25
    v_add_f32 v24, v24, v25
    """)
    for r in (8, 4, 2): a(f"v_add_f32_dpp v24, v24, v24 row_ror:{r} row_mask:0xf bank_mask:0xf")
    a(f"""
    v_cvt_pk_bf16_f32 v24, 0, v24
    v_mul_f32 v2, v24, v12
    v_cvt_pk_bf16_f32 v2, 0, v2
    v_add_f32 v2, v10, v2
    v_cvt_pk_bf16_f32 v2, v2, v2
    s_mov_b64 exec, s[56:57]
    buffer_store_short v2, v9, s[44:47], s55 offen
    s_cmp_lg_u32 s6, 0
    s_cbranch_scc1 L_rnb
    s_mov_b64 exec, 1
    buffer_store_dword v{GO+1}, v7, s[8:11], 0 offen sc1
    """)
    a.label("L_rnb")
    if stamps:
        a("s_waitcnt vmcnt(0)")
        stamp(13)
    a.label("L_Gend")
    if stamps:
        a("s_movk_i32 s48, 0xf1f\ns_cmp_ge_u32 s5, 5\ns_cselect_b32 s48, 0x301f, s48\ns_cmp_lg_u32 s3, 0\ns_cselect_b32 s48, 0x1e, s48")
        if sset == 1: a("s_bitcmp1_b32 s98, 1\ns_cselect_b32 s49, 0x1f1e, 0\ns_and_b32 s48, s48, 1\ns_or_b32 s48, s48, s49")
        flush_stamps("s48")
    a.label("L_end")
    a("s_endpgm")
    a.label("L_Amix")
    a(f"""
    buffer_store_dwordx2 v[2:3], v9, s[8:11], s54 offen sc1
    s_mov_b64 exec, s[62:63]
    buffer_store_dwordx4 v[44:47], v1, s[8:11], s55 offen sc1
    s_mov_b64 exec, -1
    s_mov_b32 s6, s50
    s_mov_b32 s58, {SPIN}
    v_mov_b32 v4, 2
    s_waitcnt vmcnt(0)
    s_atomic_swap s6, s[8:9], s49 offset:32
    """)
    a.label("L_Amp")
    a(f"""
    s_sleep {a2sleep}
    s_load_dwordx8 s[64:71], s[8:9], s52 offset:32 glc
    s_sub_u32 s58, s58, 1
    s_cbranch_scc1 L_Amg
    s_waitcnt lgkmcnt(0)
    """)
    for k in range(4): a(f"s_cmp_eq_u64 s[{64+2*k}:{65+2*k}], s[50:51]\ns_cbranch_scc0 L_Amp")
    a.label("L_Amg")
    for k in range(4): a(f"buffer_load_dwordx4 v[{24+4*k}:{27+4*k}], v1, s[8:11], s53 offen offset:{1024*k} sc1")
    a("s_branch L_A2s")

    a.raw(".p2align 6")
    a.label("L_KV")
    K0, V0 = 24, 88
    a(f"""
    s_setprio 1
    s_mov_b32 s42, 0x20000
    s_mov_b32 s46, 0x20000
    s_lshl_b32 s48, s4, 23
    s_add_u32 s48, s48, {28672*256}
    s_lshl_b32 s50, s5, 17
    s_add_u32 s48, s48, s50
    s_mul_i32 s49, s2, {rotmul}
    s_add_u32 s49, s49, s3
    s_mul_i32 s52, s49, {1024*blk}
    s_and_b32 s52, s52, 0x1ffff
    s_sub_u32 s6, s3, 4
    s_mov_b32 s60, 0xcccccccc
    s_mov_b32 s61, 0xcccccccc
    s_mov_b32 s62, 0xaaaaaaaa
    s_mov_b32 s63, 0xaaaaaaaa
    v_and_b32 v3, 15, v0
    v_lshrrev_b32 v4, 4, v0
    v_lshlrev_b32 v5, 5, v3
    v_lshl_or_b32 v6, v4, 3, v5
    v_lshlrev_b32 v3, 4, v3
    s_mul_i32 s51, s5, {OBS}
    s_add_u32 s51, s51, s12
    s_add_u32 s51, s51, {WS_OB}
    """)
    for e in range(8): a(f"v_mov_b32 v{ACC+e}, 0")
    a(f"""
    s_waitcnt lgkmcnt(0)
    s_add_u32 s40, s18, s48
    s_addc_u32 s41, s19, 0
    s_add_u32 s44, s20, s48
    s_addc_u32 s45, s21, 0
    s_barrier
    """)
    T = lambda i: f"v{K0+4*i}"
    def w_q():
        stamp(8, 2)
        lds_spin(L_QF, 1, sleep=1)
        a("s_mov_b32 s7, s48")
        stamp(9, 2)
        a(f"ds_read_b128 v[8:11], v3 offset:{L_Q}\ns_waitcnt lgkmcnt(0)")
        for i in range(16): a(f"v_dot2_f32_bf16 {T(i)}, {T(i)}, v8, 0")
        for i in range(16): a(f"v_dot2c_f32_bf16 {T(i)}, v{K0+4*i+1}, v9")
    def w_s2():
        for t in range(2, 4):
            for i in range(16): a(f"v_dot2c_f32_bf16 {T(i)}, v{K0+4*i+t}, v{8+t}")
    def w_s3():
        for k in range(8): a(f"v_add_f32_dpp {T(k)}, {T(k)}, {T(k)} row_ror:8 row_mask:0xf bank_mask:0x3")
        for k in range(8): a(f"v_add_f32_dpp {T(k)}, {T(k+8)}, {T(k+8)} row_ror:8 row_mask:0xf bank_mask:0xc")
        for k in range(4): a(f"v_add_f32_dpp {T(k)}, {T(k)}, {T(k)} row_shl:4 row_mask:0xf bank_mask:0x5")
        for k in range(4): a(f"v_add_f32_dpp {T(k)}, {T(k+4)}, {T(k+4)} row_shr:4 row_mask:0xf bank_mask:0xa")
        for k in range(4): a(f"v_add_f32_dpp {T(k)}, {T(k)}, {T(k)} quad_perm:[2,3,0,1] row_mask:0xf bank_mask:0xf")
        for k in range(2): a(f"v_cndmask_b32 {T(k)}, {T(k)}, {T(k+2)}, s[60:61]")
        for k in range(2): a(f"v_add_f32_dpp {T(k)}, {T(k)}, {T(k)} quad_perm:[1,0,3,2] row_mask:0xf bank_mask:0xf")
        a(f"""
        v_cndmask_b32 v2, {T(0)}, {T(1)}, s[62:63]
        v_cvt_pk_bf16_f32 v2, 0, v2
        v_mul_f32 v2, {SCALE}, v2
        v_cvt_pk_bf16_f32 v2, 0, v2
        v_mul_f32 v2, {LOG2E}, v2
        v_mov_b32 v14, v2
        """)
    def w_s4():
        allreduce("v_max_f32", "v14", "v3")
        a(f"""
        v_sub_f32 v2, v2, v14
        v_exp_f32 v2, v2
        s_lshl_b32 s48, s6, 3
        v_mov_b32 v4, s48
        v_mov_b32 v15, v2
        v_cvt_pk_bf16_f32 v12, v2, 0
        v_cvt_pk_bf16_f32 v13, 0, v2
        """)
        allreduce("v_add_f32", "v15", "v3")
        a(f"""
        v_mov_b32 v9, 1
        s_mov_b64 exec, 1
        ds_write_b64 v4, v[14:15] offset:{L_POST}
        ds_add_u32 v7, v9 offset:{L_C1}
        s_mov_b64 exec, -1
        """)
        stamp(6)
    def pv(i):
        for t in range(4):
            a(f"v_dot2c_f32_bf16_dpp v{ACC+2*t}, v12, v{V0+4*i+t} row_newbcast:{i} row_mask:0xf bank_mask:0xf")
            a(f"v_dot2c_f32_bf16_dpp v{ACC+2*t+1}, v13, v{V0+4*i+t} row_newbcast:{i} row_mask:0xf bank_mask:0xf")
    chunks = [w_q, w_s2, w_s3, w_s4]
    assert depth - 1 <= qpos <= 11
    pv_done = 0
    for n in range(32):
        t, i = divmod(n, 16)
        r = (K0, V0)[t] + 4 * i
        srd = ("s[40:43]", "s[44:47]")[t]
        if n >= depth: a(f"s_waitcnt vmcnt({depth-1})")
        a(f"buffer_load_dwordx4 v[{r}:{r+3}], v1, {srd}, s52 offen offset:{(i%blk)*1024} nt")
        if n < 31 and (i % blk) == blk - 1: a(f"s_add_u32 s52, s52, {8192*blk}\ns_and_b32 s52, s52, 0x1ffff")
        if n == ispos:
            assert not chunks
            a(f"s_mov_b64 exec, 1\nds_add_u32 v7, v9 offset:{L_IS}\ns_mov_b64 exec, -1")
        if n == 31:
            stamp(5)
            break
        if n >= 16 + qpos:
            if chunks: chunks.pop(0)()
            else:
                avail = n - depth - 16 + 1
                k = min(avail, pv_done + 4)
                for q in range(pv_done, k): pv(q)
                pv_done = k
    a("v_and_b32 v3, 7, v0\nv_lshlrev_b32 v3, 3, v3")
    stamp(10, 2)
    lds_spin(L_C1, 8, sleep=1)
    stamp(11, 2)
    a(f"""
    ds_read_b64 v[4:5], v3 offset:{L_POST}
    s_mov_b64 exec, 1
    ds_add_rtn_u32 v8, v7, v9 offset:{L_C3}
    s_mov_b64 exec, -1
    s_waitcnt lgkmcnt(0)
    v_mov_b32 v2, v4
    v_readfirstlane_b32 s48, v8
    """)
    for r in (4, 2, 1): a(f"v_max_f32_dpp v2, v2, v2 row_ror:{r} row_mask:0xf bank_mask:0xf")
    a(f"""
    v_sub_f32 v15, v14, v2
    v_sub_f32 v4, v4, v2
    v_exp_f32 v15, v15
    v_exp_f32 v4, v4
    s_cmp_lg_u32 s48, 0
    v_mul_f32 v3, v4, v5
    s_cbranch_scc1 L_noml
    """)
    for r in (4, 2, 1): a(f"v_add_f32_dpp v3, v3, v3 row_ror:{r} row_mask:0xf bank_mask:0xf")
    a("s_mov_b64 exec, 1")
    mstore("buffer_store_dwordx2 v[2:3], v7, s[8:11], s51 offen offset:512")
    a("s_mov_b64 exec, -1")
    stamp(14); stamp(14, 2)
    a.label("L_noml")
    a(f"""
    v_lshlrev_b32 v5, 3, v0
    s_lshl_b32 s49, s6, 9
    v_add_u32 v4, s49, v5
    """)
    stamp(12, 2)
    for q in range(pv_done, 16):
        if q >= 16 - depth: a(f"s_waitcnt vmcnt({15-q})")
        pv(q)
    stamp(15); stamp(15, 2)
    for e in range(4): a(f"v_permlane32_swap_b32 {A(e)}, {A(e+4)}")
    for e in range(4): a(f"v_add_f32 {A(e)}, {A(e)}, {A(e+4)}")
    for e in range(2): a(f"v_permlane16_swap_b32 {A(e)}, {A(e+2)}")
    for e in range(2): a(f"v_add_f32 {A(e)}, {A(e)}, {A(e+2)}")
    a(f"""
    v_mul_f32 {A(0)}, {A(0)}, v15
    v_mul_f32 {A(1)}, {A(1)}, v15
    ds_write_b64 v4, v[{ACC}:{ACC+1}] offset:{L_OACC}
    s_mov_b64 exec, 1
    ds_add_rtn_u32 v2, v7, v9 offset:{L_C2}
    s_mov_b64 exec, -1
    ds_read2st64_b64 v[24:27], v5 offset0:{L_OACC//512} offset1:{L_OACC//512+1}
    ds_read2st64_b64 v[28:31], v5 offset0:{L_OACC//512+2} offset1:{L_OACC//512+3}
    ds_read2st64_b64 v[32:35], v5 offset0:{L_OACC//512+4} offset1:{L_OACC//512+5}
    ds_read2st64_b64 v[36:39], v5 offset0:{L_OACC//512+6} offset1:{L_OACC//512+7}
    s_waitcnt lgkmcnt(0)
    """)
    stamp(13, 2)
    a(f"""
    v_readfirstlane_b32 s48, v2
    v_pk_add_f32 v[24:25], v[24:25], v[26:27]
    v_pk_add_f32 v[28:29], v[28:29], v[30:31]
    s_cmp_lg_u32 s48, 7
    s_cbranch_scc1 L_notlast
    v_pk_add_f32 v[32:33], v[32:33], v[34:35]
    v_pk_add_f32 v[36:37], v[36:37], v[38:39]
    v_pk_add_f32 v[24:25], v[24:25], v[28:29]
    v_pk_add_f32 v[32:33], v[32:33], v[36:37]
    v_pk_add_f32 v[24:25], v[24:25], v[32:33]
    """)
    mstore("buffer_store_dwordx2 v[24:25], v6, s[8:11], s51 offen")
    stamp(7); flush_stamps("0xfffe")
    a("s_endpgm")
    a.label("L_notlast")
    a.label("L_end3")
    flush_stamps("0x4000" if sset == 0 else "0")
    a.label("L_last")
    a("s_endpgm")
    nv = 160 if stamps else 152
    a.raw('.section .rodata,"a"'); a.raw(".p2align 6"); a.raw(f".amdhsa_kernel {KN}")
    a.raw(f"  .amdhsa_next_free_vgpr {nv}"); a.raw("  .amdhsa_next_free_sgpr 100"); a.raw(f"  .amdhsa_accum_offset {(nv+3)//4*4}")
    a.raw("  .amdhsa_group_segment_fixed_size 0"); a.raw("  .amdhsa_kernarg_size 96"); a.raw("  .amdhsa_user_sgpr_count 2")
    a.raw("  .amdhsa_user_sgpr_kernarg_segment_ptr 1"); a.raw("  .amdhsa_system_sgpr_workgroup_id_x 1"); a.raw(".end_amdhsa_kernel")
    open(path, "w").write(a.text())

if __name__ == "__main__":
    gen("k16c.s", stamps=True, gpre=4, gpd=2, perwave=True, sset=3)
    gen("k16s.s", stamps=True)
    gen("k16p4.s", stamps=True, gpre=4, gpd=2)
    gen("k16p3.s", stamps=True, gpre=3, gpd=2, gdepth=5)
    gen("k16p5.s", stamps=True, gpre=5, gpd=2)
    gen("k16p6.s", stamps=True, gpre=6, gpd=2)
    gen("k16.s")
    gen("k16p4n.s", gpre=4, gpd=2)
```

```python
import re
_VR = re.compile(r"\bv\[(\d+):(\d+)\]|\bv(\d+)\b")
_SR = re.compile(r"\bs\[(\d+):(\d+)\]|\bs(\d+)\b|\b(vcc)\b")
TRANS = ("v_exp_f32", "v_log_f32", "v_rcp_f32", "v_rsq_f32", "v_sqrt_f32", "v_sin_f32", "v_cos_f32")
def regs(rx, s):
    out = set()
    for m in rx.finditer(s):
        if m.group(1) is not None: out.update(range(int(m.group(1)), int(m.group(2)) + 1))
        elif m.group(3) is not None: out.add(int(m.group(3)))
        else: out.update((106, 107))
    return out
def split_ops(rest):
    ops, depth, cur = [], 0, ""
    for ch in rest:
        if ch == "[": depth += 1
        if ch == "]": depth -= 1
        if ch == "," and depth == 0: ops.append(cur.strip()); cur = ""
        else: cur += ch
    if cur.strip(): ops.append(cur.strip())
    return ops
class Ins:
    def __init__(s, text):
        s.text = text
        t = text.split(";")[0].strip()
        p = t.split(None, 1)
        s.op = p[0]; s.ops = split_ops(p[1]) if len(p) > 1 else []
        op = s.op
        s.valu = op.startswith("v_")
        s.vmem = op.startswith(("buffer_", "global_", "flat_"))
        s.ds = op.startswith("ds_")
        s.dpp = "_dpp" in op or any(k in t for k in ("row_", "quad_perm"))
        s.perm = op.startswith("v_permlane")
        s.trans = op.replace("_e32", "").replace("_e64", "") in TRANS
        s.dot = op.startswith("v_dot")
        s.base = op.replace("_dpp", "").replace("_e32", "").replace("_e64", "")
        s.vw, s.vr, s.sw, s.sr = set(), set(), set(), set()
        s.states = 1
        if op == "s_nop": s.states = int(s.ops[0]) + 1
        if s.valu:
            d = s.ops[0]
            srcs = s.ops[1:]
            if op.startswith(("v_cmp", "v_readlane", "v_readfirstlane")):
                s.sw = regs(_SR, d)
            else:
                s.vw = regs(_VR, d)
                if op.startswith(("v_add_co", "v_addc_co", "v_sub_co")): s.sw = regs(_SR, s.ops[1]); srcs = s.ops[2:]
            for o in srcs:
                s.vr |= regs(_VR, o); s.sr |= regs(_SR, o)
            if s.perm: s.vw |= regs(_VR, s.ops[1]); s.vr |= regs(_VR, d)
            if s.base in ("v_fmac_f32", "v_dot2c_f32_bf16") or s.dpp: s.vr |= regs(_VR, d) if not s.sw else set()
            s.dppsrc = regs(_VR, s.ops[1]) if s.dpp else set()
        elif s.vmem:
            for o in s.ops: s.sr |= regs(_SR, o)
            if "load" in op: s.vw = regs(_VR, s.ops[0]); s.vr = regs(_VR, ",".join(s.ops[1:]))
            else: s.vr = regs(_VR, ",".join(s.ops))
            s.widestore = ("store" in op and ("x3" in op or "x4" in op))
            s.sdata = regs(_VR, s.ops[0]) if s.widestore else set()
        elif s.ds:
            s.vr = regs(_VR, ",".join(s.ops))
            if "read" in op or "rtn" in op: s.vw = regs(_VR, s.ops[0])
def need(p, c):
    n = 0
    if p.valu:
        if c.valu and c.dpp and (p.vw & c.dppsrc): n = max(n, 2)
        if c.valu and c.perm and (p.vw & c.vr): n = max(n, 2)
        if p.trans and c.valu and not c.trans and (p.vw & (c.vr | c.vw)): n = max(n, 1)
        if p.trans and (c.vmem or c.ds) and (p.vw & c.vr): n = max(n, 1)
        if p.sw and c.valu and (p.sw & c.sr): n = max(n, 4 if c.op.startswith(("v_readlane", "v_writelane")) else 2)
        if p.sw and c.valu and c.base == "v_cndmask_b32" and len(c.ops) == 3 and (p.sw & {106, 107}): n = max(n, 2)
        if p.sw and c.vmem and (p.sw & c.sr): n = max(n, 5)
        if p.sw and c.op.startswith("s_") and not c.op.startswith(("s_nop", "s_waitcnt")):
            if p.sw & regs(_SR, ",".join(c.ops)) or ("vcc" in c.op and p.sw & {106, 107}): n = max(n, 1)
        if c.op.startswith(("v_readlane", "v_readfirstlane")) and (p.vw & c.vr): n = max(n, 1)
        if p.dot and (p.vw & (c.vr | c.vw)):
            same = c.valu and c.base == p.base
            if same:
                ab = set()
                for o in c.ops[1:3]: ab |= regs(_VR, o)
                if p.vw & ab: n = max(n, 3)
            else: n = max(n, 3)
    if (p.vmem or p.ds) and c.valu and ((c.dpp and (p.vw & c.dppsrc)) or (c.perm and (p.vw & c.vr))): n = max(n, 2)
    if p.vmem and getattr(p, "widestore", False) and (p.sdata & c.vw): n = max(n, 2)
    return n
_VOP3 = ("v_perm_b32","v_cvt_pk_bf16_f32","v_max3","v_min3","v_mad_u32","v_lshl_add","v_lshl_or","v_bfe","v_or3","v_bitop3","v_fma_f32",
         "v_mul_lo","v_readlane","v_writelane","v_pk_","v_dot2_f32","v_add3","v_mfma","v_and_or","v_add_lshl")
def isize(c):
    op, t = c.op, c.text
    if c.vmem or c.ds or op.startswith(("s_load","s_atomic","s_memtime","s_memrealtime","s_buffer")): return 8
    if c.dpp or op.startswith(_VOP3): return 8
    if op.startswith("v_cndmask") and len(c.ops) == 4 and c.ops[3] != "vcc": return 8
    if op.startswith(("s_movk","s_waitcnt","s_nop","s_sleep","s_setprio","s_branch","s_cbranch","s_barrier","s_endpgm","s_getreg")): return 4
    for o in c.ops[0 if op.startswith("s_cmp") else 1:]:
        o = o.strip()
        if re.fullmatch(r"-?(0x[0-9a-fA-F]+|\d+)", o):
            v = int(o, 0)
            if not (-16 <= v <= 64): return 8
        elif re.match(r"L_", o): return 8
    return 4
class Asm:
    def __init__(s):
        s.lines = []; s.hist = []; s.nl = 0
        s.pad = None; s.padn = 0; s.padbytes = 0; s.nopad = False
    def pad_start(s, name, spacing):
        s.pad = (name, spacing); s.padn = 0; s.padbytes = 0
        s._emit_pad()
    def _emit_pad(s, target=None):
        name, _ = s.pad
        s.lines.append(f"{name}_{s.padn}:")
        t = target or f"{name}_{s.padn+1}"
        c = Ins(f"s_cbranch_execz {t}"); s.hist.append(c); s.lines.append("  " + c.text)
        s.padn += 1; s.padbytes = 4
    def pad_end(s, back):
        s._emit_pad(back); s.pad = None
    def raw(s, t): s.lines.append(t)
    def label(s, name):
        s.lines.append(name + ":")
    def newlabel(s, p="L"):
        s.nl += 1; return f"{p}_{s.nl}"
    def __call__(s, text):
        for t in text.strip().split("\n"):
            t = t.strip()
            if not t or t.startswith(";"): continue
            if t.endswith(":"): s.label(t[:-1]); continue
            c = Ins(t)
            if s.pad:
                if s.padbytes + isize(c) + 4 > s.pad[1] and not s.nopad: s._emit_pad()
                s.padbytes += isize(c)
                if c.op == "s_and_b64" and c.ops[0] == "exec": s.nopad = True
                if c.op == "s_mov_b64" and c.ops[0] == "exec": s.nopad = False
            dist = 0; pad = 0
            for p in reversed(s.hist[-8:]):
                n = need(p, c)
                if n > dist: pad = max(pad, n - dist)
                dist += p.states
                if dist >= 6: break
            if pad:
                nop = Ins(f"s_nop {pad-1}"); s.hist.append(nop); s.lines.append("  " + nop.text); s.padbytes += 4
            s.hist.append(c); s.lines.append("  " + t)
    def text(s): return "\n".join(s.lines) + "\n"
```

```python
import sys
sys.path.insert(0, "gen")
from asmlib import Asm
KN = "recurrent_scan__sliding_block_cached__swiglu_ffn__decode_kernel"
HDR = open("recurrent_scan__sliding_block_cached__swiglu_ffn__decode.s.ref").read().split("; Override launch")[0]

GS = 3 * 4096 + 256
WS_E, WS_G = 0, 0x1000
WS_OA, WS_OB, WS_F = WS_G, WS_G + 4096, WS_G + 9216
OBS = 640
WS_T = 0x80000
TS = 5120
T_END = WS_T + 91 * TS
L_QF, L_C1, L_C2, L_TAG, L_OPF, L_CA, L_IS, L_PC, L_HOLD, L_POST = 0, 4, 8, 12, 16, 20, 24, 28, 32, 64
L_Q, L_H, L_AACC, L_OACC = 256, 512, 1024, 2048
L_GO = L_AACC
LDS_BYTES = 6144
LOG2E = "0x3fb8aa3b"
SCALE = "0x3db504f3"

def gen(path, stamps=False, rotmul=5, a2sleep=8, sset=0, cpf=True, gwait=8, perwave=False, depth=4, qpos=8, gdepth=4,
        blk=1, xmap=2, SPIN=20000, forcemixed=False, ispos=31, zfirst=True, psleep=0, pfl='sc1', gpre=0, gpd=1, zwait=0, no='', warm=0, warmkv=True, amp=None, gstep=0, spec=True, hmul=None, inbox=False, dual=False, outsc='', apat=0, gpat=0, bal=None, balfrom=4, ftab=None, dsched=None, abar=None, adepth=None, tlb=0, fc=None, rd2=False, rsleep=0, zsleep=0, xpos=0, kpre=0):
    a = Asm()
    a.raw(HDR.rstrip())
    a.raw(f"; @launch grid=(256,1,1) block=(768,1,1) lds={LDS_BYTES}")
    if perwave: a.raw("; nstamp=3072")
    a.raw('.amdgcn_target "amdgcn-amd-amdhsa--gfx950"')
    a.raw(".text"); a.raw(f".globl {KN}"); a.raw(".p2align 8"); a.raw(f".type {KN},@function"); a.raw(f"{KN}:")
    def stamp(i, ss=0):
        if stamps and (ss == sset or (ss == 0 and (i < 8 or i == 13 or sset == 3))):
            a(f"s_memrealtime s[96:97]\ns_waitcnt lgkmcnt(0)\ns_mov_b32 s{80+i}, s96\ns_bitset1_b32 s98, {i}")
    def flush_stamps(mask):
        if not stamps: return
        a("s_mov_b64 exec, -1\nv_lshlrev_b32 v154, 3, v0\nv_mov_b32 v153, 0")
        if perwave:
            a("s_mul_i32 s59, s2, 12\ns_add_u32 s59, s59, s3\ns_lshl_b32 s59, s59, 7\ns_add_u32 s59, s59, 0x20000000")
            mask = "0xffff"
        else:
            a("s_lshl_b32 s59, s2, 7\ns_add_u32 s59, s59, 0x20000000")
        for i in range(16): a(f"v_writelane_b32 v152, s{80+i}, {i}")
        L = a.newlabel("Lfl")
        a(f"s_and_b32 s98, s98, {mask}\ns_mov_b32 s99, 0\ns_cbranch_scc0 {L}\ns_mov_b64 exec, s[98:99]\nbuffer_store_dwordx2 v[152:153], v154, s[8:11], s59 offen")
        a.label(L)
    def allreduce(op, v, t):
        for r in (8, 4, 2, 1):
            a(f"{op}_dpp {v}, {v}, {v} row_ror:{r} row_mask:0xf bank_mask:0xf")
        a(f"v_mov_b32 {t}, {v}\nv_permlane16_swap_b32 {t}, {v}\n{op} {v}, {t}, {v}")
        a(f"v_mov_b32 {t}, {v}\nv_permlane32_swap_b32 {t}, {v}\n{op} {v}, {t}, {v}")
    def lds_spin(off, val, sleep=2):
        L = a.newlabel("Lsp"); X = a.newlabel("Lspx")
        a(f"s_mov_b32 s58, {SPIN}")
        a.label(L)
        a(f"ds_read_b32 v2, v7 offset:{off}\ns_waitcnt lgkmcnt(0)\nv_readfirstlane_b32 s48, v2\ns_cmp_ge_u32 s48, {val}\ns_cbranch_scc1 {X}")
        a((f"s_sleep {sleep}\n" if sleep else "") + f"s_sub_u32 s58, s58, 1\ns_cbranch_scc0 {L}")
        a.label(X)
    def mstore(text):
        L = a.newlabel("Lms"); X = a.newlabel("Lmx")
        a(f"s_cmp_eq_u32 s7, 1\ns_cbranch_scc0 {L}\n{text}\ns_branch {X}")
        a.label(L)
        a(f"{text} sc1")
        a.label(X)
    ACC = 16
    A = lambda e: f"v{ACC+e}"

    if stamps:
        a("s_mov_b32 s98, 0")
        stamp(0)
    if amp: a("s_memrealtime s[90:91]")
    def ampmark(name):
        if amp == name: a("s_memrealtime s[92:93]\ns_waitcnt lgkmcnt(0)")
    a(f"""
    s_cmp_ge_u32 s2, 256
    s_cbranch_scc1 L_end
    s_load_dwordx16 s[16:31], s[0:1], 0
    s_load_dwordx4 s[32:35], s[0:1], 64
    s_load_dwordx2 s[8:9], s[0:1], 88
    {"s_load_dwordx2 s[38:39], s[0:1], 80" if fc else ""}
    """)
    if cpf:
        a("v_lshlrev_b32 v2, 7, v0\ns_getpc_b64 s[48:49]")
        a.label("L_pc")
        a(f"""
        v_cmp_gt_u32 vcc, L_last-L_pc, v2
        s_and_saveexec_b64 s[50:51], vcc
        s_cbranch_execz L_nocpf
        global_load_dword v151, v2, s[48:49]
        """)
        a.label("L_nocpf")
        a("s_mov_b64 exec, -1")
    a(f"""
    v_lshrrev_b32 v1, 6, v0
    v_and_b32 v0, 63, v0
    v_readfirstlane_b32 s3, v1
    v_lshlrev_b32 v1, 4, v0
    v_mov_b32 v7, 0
    """)
    if xmap == 2:
        a("s_bfe_u32 s5, s2, 0x30003\ns_lshr_b32 s4, s2, 6\ns_lshl_b32 s4, s4, 3\ns_and_b32 s6, s2, 7\ns_add_u32 s4, s4, s6")
    else:
        a("s_lshr_b32 s4, s2, 3\ns_add_u32 s5, s2, s4\ns_and_b32 s5, s5, 7")
    a(f"""
    s_mov_b32 s43, 0x20000
    s_mov_b32 s47, 0x20000
    s_mov_b32 s10, 0x40000000
    s_mov_b32 s11, 0x20000
    s_mul_i32 s12, s4, {GS}
    s_cmp_ge_u32 s3, 4
    s_cbranch_scc1 L_KV
    """)
    W0 = 24
    a(f"""
    s_setprio 3
    v_mov_b32 v4, 0
    v_mov_b32 v5, 0
    v_mov_b32 v6, 0
    s_and_b32 s7, s5, 1
    ds_write_b128 v1, v[4:7]
    ds_write_b128 v1, v[4:7] offset:1024
    s_and_b32 s13, s3, 1
    s_and_b32 s14, s5, 6
    s_add_u32 s14, s14, s13
    s_mul_i32 s14, s14, 80
    v_mul_u32_u24 v2, 20, v0
    v_lshrrev_b32 v3, 3, v0
    v_mul_u32_u24 v4, 20, v3
    v_and_b32 v5, 7, v0
    v_lshlrev_b32 v6, 4, v5
    s_lshl_b32 s48, s14, 1
    s_mov_b32 s46, 1280
    """)
    if ftab is None: a("s_mov_b32 s36, s4")
    else:
        tab = 0
        for x in range(8): tab |= (ftab.index(x) if x in ftab else 7) << (4 * x)
        a(f"s_lshl_b32 s36, s4, 2\ns_lshr_b32 s36, {hex(tab)}, s36\ns_and_b32 s36, s36, 7\ns_add_u32 s36, s36, 24\ns_cmp_lt_u32 s4, 24\ns_cselect_b32 s36, s4, s36")
    a(f"""
    s_lshl_b32 s53, s36, 7
    s_lshl_b32 s54, s7, 7
    s_lshl_b32 s55, s4, 8
    s_add_u32 s54, s54, s55
    s_movk_i32 s52, 8192
    s_cmp_ge_u32 s3, 2
    s_cselect_b32 s52, 3456, s52
    s_cselect_b32 s53, s53, s54
    s_mul_i32 s42, s52, 640
    s_mul_i32 s49, s52, {1 if apat == 1 else 10}
    {'s_lshl_b32 s51, s52, 3' if apat == 1 else 's_mov_b32 s51, s52'}
    s_mul_i32 s54, s14, s52
    s_add_u32 s53, s53, s54
    v_mad_u32_u24 v6, v3, s49, v6
    """)
    if apat == 2:
        a("""
        v_mov_b32 v6, v1
        s_movk_i32 s51, 1024
        s_lshl_b32 s53, s4, 4
        s_lshl_b32 s54, s5, 1
        s_add_u32 s53, s53, s54
        s_add_u32 s53, s53, s13
        s_lshl_b32 s54, s36, 3
        s_and_b32 s55, s5, 6
        s_add_u32 s54, s54, s55
        s_add_u32 s54, s54, s13
        s_cmp_ge_u32 s3, 2
        s_cselect_b32 s53, s54, s53
        s_mul_i32 s53, s53, 10240
        """)
    if apat == 3:
        a("""
        s_cmp_ge_u32 s3, 2
        s_cbranch_scc1 L_ap3
        v_lshrrev_b32 v6, 4, v0
        v_mul_u32_u24 v6, 0x14000, v6
        v_and_b32 v8, 15, v0
        v_lshl_add_u32 v6, v8, 4, v6
        s_lshl_b32 s53, s5, 1
        s_add_u32 s53, s53, s13
        s_mul_i32 s53, s53, 0x50000
        s_lshl_b32 s54, s4, 8
        s_add_u32 s53, s53, s54
        """)
        a.label("L_ap3")
    a(f"""
    s_cmp_ge_u32 s36, 27
    s_cselect_b32 s15, 2, 4
    s_cmp_eq_u32 s7, 0
    s_waitcnt lgkmcnt(0)
    s_cselect_b32 s40, s28, s30
    s_cselect_b32 s41, s29, s31
    s_cmp_ge_u32 s3, 2
    s_cselect_b32 s40, s40, s22
    s_cselect_b32 s41, s41, s23
    s_mov_b32 s44, s16
    s_mov_b32 s45, s17
    s_cmp_ge_u32 s3, s15
    s_cbranch_scc1 L_Anoload
    """)
    for i in range(10):
        if i == xpos:
            a("""
            buffer_load_dwordx4 v[104:107], v2, s[44:47], 0 offen
            buffer_load_dword v108, v2, s[44:47], 0 offen offset:16
            buffer_load_dwordx4 v[110:113], v4, s[44:47], s48 offen
            buffer_load_dword v114, v4, s[44:47], s48 offen offset:16
            """)
        a(f"buffer_load_dwordx4 v[{W0+4*i}:{W0+4*i+3}], v6, s[40:43], s53 offen nt")
        if i < 9: a("s_add_u32 s53, s53, s51")
    if abar is not None: a(f"s_waitcnt vmcnt({abar})")
    a.label("L_Anoload")
    a("s_barrier")
    ampmark("bar")
    stamp(8, 1)
    a(f"""
    s_load_dword s50, s[8:9], {WS_E}
    v_lshl_add_u32 v9, v5, 3, v3
    v_lshlrev_b32 v9, 3, v9
    v_lshlrev_b32 v8, 2, v0
    s_cmp_ge_u32 s3, s15
    s_cbranch_scc1 L_Adone
    s_mov_b32 s56, 0xffff0000
    s_mov_b32 s60, 0x05040100
    s_mov_b32 s61, 0x07060302
    s_lshl_b32 s49, s3, 8
    v_add_u32 v10, s49, v8
    """)
    for e in range(8): a(f"v_mov_b32 v{ACC+e}, 0")
    a(f"s_waitcnt vmcnt({12-xpos})")
    ampmark("x")
    stamp(9, 1)
    for k in range(5):
        a(f"v_lshlrev_b32 v{120+2*k}, 16, v{104+k}\nv_and_b32 v{121+2*k}, s56, v{104+k}")
    a("v_add_f32 v2, v120, v121")
    for k in range(2, 10): a(f"v_add_f32 v2, v2, v{120+k}")
    allreduce("v_add_f32", "v2", "v4")
    a("v_mul_f32 v2, 0x3acccccd, v2")
    for k in range(10): a(f"v_sub_f32 v{120+k}, v{120+k}, v2")
    a("v_mul_f32 v5, v120, v120")
    for k in range(1, 10): a(f"v_fmac_f32 v5, v{120+k}, v{120+k}")
    allreduce("v_add_f32", "v5", "v4")
    a(f"""
    v_mul_f32 v5, 0x3acccccd, v5
    v_cvt_pk_bf16_f32 v2, 0, v2
    v_cvt_pk_bf16_f32 v5, 0, v5
    v_add_f32 v5, 0x3727c5ac, v5
    v_cvt_pk_bf16_f32 v5, 0, v5
    v_sqrt_f32 v5, v5
    v_cvt_pk_bf16_f32 v5, 0, v5
    v_rcp_f32 v5, v5
    s_waitcnt vmcnt({10-xpos})
    """)
    for k in range(5):
        x = 110 + k
        a(f"""
        v_lshlrev_b32 v120, 16, v{x}
        v_and_b32 v121, s56, v{x}
        v_sub_f32 v120, v120, v2
        v_sub_f32 v121, v121, v2
        v_cvt_pk_bf16_f32 v120, 0, v120
        v_cvt_pk_bf16_f32 v121, 0, v121
        v_mul_f32 v120, v120, v5
        v_mul_f32 v121, v121, v5
        v_cvt_pk_bf16_f32 v{130+k}, v120, v121
        """)
    stamp(10, 1)
    for k in range(5):
        a(f"s_waitcnt vmcnt({8-2*k})")
        if k == 4: stamp(11, 1); stamp(11, 4)
        if k == 2: stamp(10, 4)
        for t in range(4):
            lo, hi = W0 + 8 * k + t, W0 + 8 * k + 4 + t
            a(f"v_perm_b32 v{140+t}, v{hi}, v{lo}, s61\nv_perm_b32 v{lo}, v{hi}, v{lo}, s60")
        for t in range(4):
            lo = W0 + 8 * k + t
            a(f"v_dot2c_f32_bf16 {A(2*t)}, v{lo}, v{130+k}\nv_dot2c_f32_bf16 {A(2*t+1)}, v{140+t}, v{130+k}")
    for e in range(4): a(f"v_permlane32_swap_b32 {A(e)}, {A(e+4)}")
    for e in range(4): a(f"v_add_f32 {A(e)}, {A(e)}, {A(e+4)}")
    for e in range(2): a(f"v_permlane16_swap_b32 {A(e)}, {A(e+2)}")
    for e in range(2): a(f"v_add_f32 {A(e)}, {A(e)}, {A(e+2)}")
    a(f"""
    v_add_f32_dpp {A(0)}, {A(0)}, {A(0)} row_ror:8 row_mask:0xf bank_mask:0x3
    v_add_f32_dpp {A(0)}, {A(1)}, {A(1)} row_ror:8 row_mask:0xf bank_mask:0xc
    ds_write_b32 v10, {A(0)} offset:{L_AACC}
    """)
    a.label("L_Adone")
    ampmark("adone")
    a(f"""
    v_mov_b32 v4, 1
    s_mov_b64 exec, 1
    ds_add_rtn_u32 v2, v7, v4 offset:{L_CA}
    s_mov_b64 exec, -1
    ds_read2st64_b32 v[24:25], v8 offset0:{L_AACC//256} offset1:{L_AACC//256+2}
    ds_read2st64_b32 v[26:27], v8 offset0:{L_AACC//256+1} offset1:{L_AACC//256+3}
    s_lshl_b32 s49, s5, 9
    s_add_u32 s53, s12, {WS_OA}
    s_add_u32 s54, s53, s49
    s_mul_i32 s55, s5, {OBS}
    s_add_u32 s55, s55, s12
    s_add_u32 s55, s55, {WS_OB}
    v_mov_b32 v44, -1
    v_mov_b32 v45, -1
    v_mov_b32 v46, -1
    v_mov_b32 v47, -1
    s_mov_b32 s62, -1
    s_movk_i32 s63, 0xff
    s_waitcnt lgkmcnt(0)
    v_readfirstlane_b32 s48, v2
    v_add_f32 v2, v24, v26
    v_add_f32 v3, v25, v27
    s_cmp_lg_u32 s48, 3
    s_cbranch_scc1 L_G
    buffer_store_dwordx2 v[2:3], v9, s[8:11], s54 offen
    s_mov_b64 exec, s[62:63]
    buffer_store_dwordx4 v[44:47], v1, s[8:11], s55 offen
    s_mov_b64 exec, -1
    """)
    stamp(1)
    a(f"""
    s_getreg_b32 s56, hwreg(HW_REG_XCC_ID, 0, 4)
    s_mul_i32 s50, s50, 0x9e3779b1
    s_add_u32 s50, s50, 0x7f4a7c15
    s_mov_b32 s51, s50
    {"s_mov_b32 s56, s5" if forcemixed else ""}
    s_add_u32 s56, s56, s50
    s_mov_b32 s57, s56
    s_mov_b32 s6, s56
    s_add_u32 s52, s12, {WS_F}
    s_lshl_b32 s49, s5, 2
    s_add_u32 s49, s49, s52
    s_mov_b32 s58, {SPIN}
    s_waitcnt vmcnt(0)
    s_atomic_swap s6, s[8:9], s49
    """)
    stamp(2)
    a.label("L_A2p")
    a(f"""
    s_sleep {a2sleep}
    s_load_dwordx8 s[64:71], s[8:9], s52 glc
    s_sub_u32 s58, s58, 1
    s_cbranch_scc1 L_A2g
    s_waitcnt lgkmcnt(0)
    """)
    for k in range(8): a(f"s_sub_u32 s48, s{64+k}, s50\ns_cmp_ge_u32 s48, 16\ns_cbranch_scc1 L_A2p")
    for k in range(4): a(f"s_cmp_eq_u64 s[{64+2*k}:{65+2*k}], s[56:57]\ns_cbranch_scc0 L_Amix")
    a.label("L_A2g")
    stamp(3)
    for k in range(4): a(f"buffer_load_dwordx4 v[{24+4*k}:{27+4*k}], v1, s[8:11], s53 offen offset:{1024*k} nt")
    a.label("L_A2s")
    a("s_waitcnt vmcnt(0) lgkmcnt(0)")
    for e in range(4): a(f"v_add_f32 v{24+e}, v{24+e}, v{28+e}\nv_add_f32 v{32+e}, v{32+e}, v{36+e}")
    for e in range(4): a(f"v_add_f32 v{24+e}, v{24+e}, v{32+e}")
    a(f"""
    v_cvt_pk_bf16_f32 v28, v24, v26
    v_cvt_pk_bf16_f32 v25, 0, v25
    v_cvt_pk_bf16_f32 v27, 0, v27
    ds_write_b32 v8, v28 offset:{L_Q}
    v_mov_b32 v29, v25
    v_mov_b32 v30, v27
    v_permlane32_swap_b32 v25, v29
    v_permlane32_swap_b32 v27, v30
    v_mul_f32 v32, 0xbfb8aa3b, v25
    v_mul_f32 v33, 0xbfb8aa3b, v27
    v_exp_f32 v32, v32
    v_exp_f32 v33, v33
    v_add_f32 v32, 1.0, v32
    v_add_f32 v33, 1.0, v33
    v_rcp_f32 v32, v32
    v_rcp_f32 v33, v33
    v_mul_f32 v32, v25, v32
    v_mul_f32 v33, v27, v33
    v_cvt_pk_bf16_f32 v32, 0, v32
    v_cvt_pk_bf16_f32 v33, 0, v33
    v_mul_f32 v32, v32, v29
    v_mul_f32 v33, v33, v30
    v_cvt_pk_bf16_f32 v28, v32, v33
    v_mov_b32 v3, s50
    ds_write_b32 v8, v28 offset:{L_H}
    s_mov_b64 exec, 1
    ds_write_b32 v7, v3 offset:{L_TAG}
    ds_write_b32 v7, v4 offset:{L_QF}
    s_mov_b64 exec, -1
    """)
    stamp(4)
    if warm:
        a("s_branch L_G2")
        a.label("L_G")
        a("s_mov_b64 exec, 0")
        if warmkv: a("s_cmp_eq_u32 s48, 0\ns_cbranch_scc1 PK1_0\ns_cmp_eq_u32 s48, 1\ns_cbranch_scc1 PK2_0")
        a("s_branch PG_0")
        a.label("L_wback")
        a("s_mov_b64 exec, -1")
        a.label("L_G2")
    else:
        if fc: a("s_branch L_G2")
        a.label("L_G")
        if fc:
            a("s_cmp_lg_u32 s48, 0\ns_cbranch_scc1 L_G2")
            for c, n in enumerate(fc["cp"]):
                lds_spin(L_PC, 8 * c + fc.get("thr", 4), sleep=2)
                a(f"s_mov_b32 s50, 1\ns_atomic_add s50, s[38:39], {64*c} glc\ns_mov_b32 s51, 0\ns_waitcnt lgkmcnt(0)")
                for lt, k in sorted(fc["tab"], reverse=True):
                    a(f"s_cmp_lt_u32 s50, {lt}\ns_cselect_b32 s51, {n + fc['lag'] + k}, s51")
                a(f"v_mov_b32 v2, s51\nds_write_b32 v7, v2 offset:{L_HOLD}")
            a.label("L_G2")
    GW, GG, GP, GM, GO = 24, 56, 72, 64, 76
    a(f"""
    s_cmp_lg_u32 s3, 3
    s_cbranch_scc1 L_G3
    v_and_b32 v3, 7, v0
    v_lshlrev_b32 v3, 3, v3
    s_mul_i32 s51, s5, {OBS}
    s_add_u32 s51, s51, s12
    s_add_u32 s51, s51, {WS_OB}
    """)
    lds_spin(L_C1, 8, sleep=2)
    a(f"""
    ds_read_b64 v[4:5], v3 offset:{L_POST}
    ds_read_b32 v6, v7 offset:{L_QF}
    s_waitcnt lgkmcnt(0)
    v_mov_b32 v2, v4
    v_readfirstlane_b32 s7, v6
    """)
    for r in (4, 2, 1): a(f"v_max_f32_dpp v2, v2, v2 row_ror:{r} row_mask:0xf bank_mask:0xf")
    a("v_sub_f32 v4, v4, v2\nv_exp_f32 v4, v4\nv_mul_f32 v3, v4, v5")
    for r in (4, 2, 1): a(f"v_add_f32_dpp v3, v3, v3 row_ror:{r} row_mask:0xf bank_mask:0xf")
    a("s_mov_b64 exec, 1")
    mstore("buffer_store_dwordx2 v[2:3], v7, s[8:11], s51 offen offset:512")
    a("s_mov_b64 exec, -1")
    if sset != 3: stamp(14)
    a.label("L_G3")
    a(f"""
    v_lshrrev_b32 v3, 3, v0
    v_and_b32 v4, 7, v0
    v_lshlrev_b32 v5, 4, v4
    s_movk_i32 s49, {1280 if gpat == 1 else 10240}
    v_mad_u32_u24 v8, v3, s49, v5
    """)
    if inbox:
        a("v_lshrrev_b32 v10, 5, v0\nv_lshl_add_u32 v10, v4, 1, v10\nv_mul_u32_u24 v10, 3072, v10\nv_and_b32 v2, 16, v0\nv_add_u32 v10, v10, v2")
    else:
        a("v_lshrrev_b32 v10, 4, v0\nv_lshl_add_u32 v10, v4, 2, v10\nv_lshlrev_b32 v10, 4, v10")
    if rd2:
        assert not inbox
        a(f"""
        s_mov_b32 s76, -1
        s_mov_b32 s64, s8
        s_mov_b32 s65, s9
        s_mov_b32 s66, {T_END}
        s_mov_b32 s67, 0x20000
        s_mov_b32 s72, s34
        s_mov_b32 s73, s35
        s_mov_b32 s74, 1280
        s_mov_b32 s75, 0x20000
        s_mov_b32 s78, 3
        s_mov_b32 s79, 3
        v_lshrrev_b32 v104, 1, v0
        v_and_b32 v105, 1, v0
        v_mul_u32_u24 v104, {TS}, v104
        v_lshl_add_u32 v104, v105, 4, v104
        v_lshrrev_b32 v2, 5, v0
        v_lshl_add_u32 v105, v105, 1, v2
        v_lshlrev_b32 v105, 1, v105
        """)
    TSL = 32 if inbox else TS
    ZB = 2048 if inbox else 64 * TS
    a(f"""
    s_cmp_ge_u32 s5, 5
    s_cbranch_scc1 L_Gd
    s_mov_b32 s40, s24
    s_mov_b32 s41, s25
    s_mov_b32 s42, {4096*1280}
    s_lshr_b32 s14, s3, 1
    s_lshl_b32 s48, s4, 1
    s_add_u32 s48, s48, s14
    s_lshl_b32 s49, s5, 1
    s_add_u32 s49, s49, s13
    s_mul_i32 s52, s48, {64*1280}
    s_mul_i32 s57, s48, {TSL}
    s_add_u32 s57, s57, {WS_T}
    s_branch L_Gl
    """)
    a.label("L_Gd")
    a(f"""
    s_cmp_ge_u32 s36, 27
    s_cbranch_scc1 L_Gend
    s_sub_u32 s49, s5, 5
    s_lshl_b32 s49, s49, 2
    s_add_u32 s49, s49, s3
    s_cmp_ge_u32 s49, 10
    s_cbranch_scc1 L_Gend
    s_mov_b32 s40, s32
    s_mov_b32 s41, s33
    s_mov_b32 s42, {1728*1280}
    s_mul_i32 s52, s36, {64*1280}
    s_mul_i32 s57, s36, {TSL}
    s_add_u32 s57, s57, {WS_T+ZB}
    """)
    if rd2:
        a(f"""
        s_cmp_ge_u32 s49, 8
        s_cbranch_scc1 L_Gl
        s_cmp_ge_u32 s4, 20
        s_cbranch_scc1 L_Gl
        s_lshl_b32 s76, s4, 3
        s_add_u32 s76, s76, s49
        s_lshl_b32 s48, s76, 5
        s_add_u32 s68, s48, {WS_T}
        s_add_u32 s69, s48, {WS_T+32*TS}
        s_add_u32 s70, s48, {WS_T+64*TS}
        s_lshl_b32 s71, s76, 3
        buffer_load_ushort v106, v105, s[44:47], s71 offen
        """)
    a.label("L_Gl")
    a(f"""
    s_lshl_b32 s48, s49, 7
    s_add_u32 s52, s52, s48
    s_add_u32 s53, s52, 5120
    s_mul_i32 s48, s49, {16*3072 if inbox else 512}
    s_add_u32 s57, s57, s48
    s_mov_b32 s60, 0x05040100
    s_mov_b32 s61, 0x07060302
    s_mov_b32 s62, 0x00ff00ff
    s_mov_b32 s63, 0x00ff00ff
    s_add_u32 s54, s12, {WS_OB}
    s_lshl_b32 s55, s14, 8
    s_add_u32 s55, s55, s54
    v_lshrrev_b32 v2, 4, v0
    v_and_b32 v5, 15, v0
    v_mul_u32_u24 v11, {OBS}, v2
    v_lshl_add_u32 v9, v5, 4, v11
    v_lshlrev_b32 v6, 4, v3
    s_lshl_b32 s48, s3, 7
    v_add_u32 v14, s48, v6
    v_lshl_add_u32 v15, v5, 2, v2
    v_lshlrev_b32 v15, 1, v15
    v_add_u32 v15, s48, v15
    """)
    for e in range(8): a(f"v_mov_b32 v{ACC+e}, 0")
    def gather_o():
        for k in range(2):
            a(f"buffer_load_dwordx4 v[{GG+4*k}:{GG+4*k+3}], v9, s[8:11], s55 offen offset:{4*OBS*k} {pfl}")
    def gather_ml():
        for k in range(2):
            a(f"buffer_load_dwordx2 v[{GM+2*k}:{GM+2*k+1}], v11, s[8:11], s54 offen offset:{512+4*OBS*k} {pfl}")
    def perms(ks):
        for k in ks:
            for t in range(4):
                lo, hi = GW + 8 * k + t, GW + 8 * k + 4 + t
                a(f"v_perm_b32 v{88+4*k+t}, v{hi}, v{lo}, s61\nv_perm_b32 v{lo}, v{hi}, v{lo}, s60")
    if gpat == 2:
        a("""
        v_mov_b32 v8, v1
        s_mul_i32 s52, s4, 20
        s_lshl_b32 s53, s5, 2
        s_add_u32 s52, s52, s53
        s_add_u32 s52, s52, s3
        s_mul_i32 s53, s36, 10
        s_add_u32 s53, s53, s49
        s_cmp_ge_u32 s5, 5
        s_cselect_b32 s52, s53, s52
        s_lshl_b32 s52, s52, 13
        """)
    if amp == "q":
        lds_spin(L_QF, 1, sleep=1); ampmark("q")
    if gstep:
        a(f"s_mul_i32 s15, s3, {gstep}\ns_add_u32 s15, s15, {gwait}\ns_min_u32 s15, s15, 8")
        lds_spin(L_IS, "s15", sleep=2)
    else: lds_spin(L_IS, gwait, sleep=2)
    ampmark("is")
    gather_ml()
    for i in range(8):
        if i >= gdepth: a(f"s_waitcnt vmcnt({gdepth-1})")
        if gpat == 2:
            a(f"buffer_load_dwordx4 v[{GW+4*i}:{GW+4*i+3}], v8, s[40:43], s52 offen nt\ns_add_u32 s52, s52, 1024")
        elif gpat == 1:
            a(f"buffer_load_dwordx4 v[{GW+4*i}:{GW+4*i+3}], v8, s[40:43], s52 offen nt\ns_add_u32 s52, s52, 10240")
        else:
            a(f"buffer_load_dwordx4 v[{GW+4*i}:{GW+4*i+3}], v8, s[40:43], s{52+i//4} offen offset:{(i%4)*1280} nt")
        if i == 3:
            a(f"""
            ds_read_b32 v{GO+1}, v7 offset:{L_TAG}
            ds_read_b32 v{GO+3}, v7 offset:{L_TAG}
            ds_read_b128 v[{GP}:{GP+3}], v6 offset:{L_H}
            """)
    stamp(8); stamp(8, 4)
    if 'B' in no:
        a("s_waitcnt vmcnt(0)")
        stamp(9); stamp(9, 4)
        a("s_branch L_Gend")
    if warm: a.pad_start("PG", warm)
    a("s_waitcnt vmcnt(4) lgkmcnt(0)")
    perms((0, 1))
    a(f"s_mov_b32 s58, {SPIN}\ns_cmp_lt_u32 s5, 5\ns_cbranch_scc1 L_Gmc")
    if rd2: a(f"v_cmp_gt_u32 vcc, 54, v0\nv_lshlrev_b32 v106, 16, v106\nv_cndmask_b32 v107, 0, v{GO+1}, vcc")
    a("s_waitcnt vmcnt(0)\ns_branch L_Gw")
    a.label("L_Gmr")
    if psleep: a(f"s_sleep {psleep}")
    gather_ml()
    a("s_waitcnt vmcnt(0)")
    a.label("L_Gmc")
    a(f"""
    s_sub_u32 s58, s58, 1
    s_cbranch_scc1 L_Gmx
    v_max3_u32 v2, v{GM}, v{GM+1}, v{GM+2}
    v_max_u32 v2, v2, v{GM+3}
    v_cmp_eq_u32 vcc, -1, v2
    s_cbranch_vccnz L_Gmr
    """)
    a.label("L_Gmx")
    stamp(14, 3)
    if sset == 3: a(f"s_sub_u32 s95, {SPIN}, s58\ns_mul_i32 s95, s95, 100\ns_add_u32 s95, s95, s80\ns_bitset1_b32 s98, 15")
    a(f"""
    v_max_f32 v2, v{GM}, v{GM+2}
    v_mov_b32 v3, v2
    v_permlane16_swap_b32 v3, v2
    v_max_f32 v2, v3, v2
    v_mov_b32 v3, v2
    v_permlane32_swap_b32 v3, v2
    v_max_f32 v2, v3, v2
    v_sub_f32 v12, v{GM}, v2
    v_sub_f32 v13, v{GM+2}, v2
    v_exp_f32 v12, v12
    v_exp_f32 v13, v13
    v_mul_f32 v2, v12, v{GM+1}
    v_fmac_f32 v2, v13, v{GM+3}
    v_mov_b32 v3, v2
    v_permlane16_swap_b32 v3, v2
    v_add_f32 v2, v3, v2
    v_mov_b32 v3, v2
    v_permlane32_swap_b32 v3, v2
    v_add_f32 v2, v3, v2
    v_rcp_f32 v2, v2
    v_mul_f32 v12, v12, v2
    v_mul_f32 v13, v13, v2
    """)
    stamp(9)
    lds_spin(L_OPF, 1, sleep=0)
    gather_o()
    a(f"s_mov_b32 s58, {SPIN}\ns_waitcnt vmcnt(2)")
    a.label("L_Gw")
    stamp(5, 3)
    perms((2, 3))
    stamp(7, 3)
    a("s_cmp_ge_u32 s5, 5\ns_cbranch_scc1 L_Gdot\ns_branch L_Gchk")
    a.label("L_Gre")
    if psleep: a(f"s_sleep {psleep}")
    gather_o()
    a.label("L_Gchk")
    a(f"""
    s_sub_u32 s58, s58, 1
    s_waitcnt vmcnt(0)
    s_cbranch_scc1 L_Gc
    v_max3_u32 v2, v{GG}, v{GG+1}, v{GG+2}
    v_max3_u32 v3, v{GG+3}, v{GG+4}, v{GG+5}
    v_max3_u32 v2, v2, v{GG+6}, v{GG+7}
    v_max_u32 v2, v2, v3
    v_cmp_eq_u32 vcc, -1, v2
    s_and_b64 exec, exec, vcc
    s_cbranch_execnz L_Gre
    """)
    a.label("L_Gc")
    a("s_mov_b64 exec, -1")
    stamp(10)
    if sset == 3: a(f"s_sub_u32 s86, {SPIN}, s58\ns_mul_i32 s86, s86, 100\ns_add_u32 s86, s86, s80\ns_bitset1_b32 s98, 6")
    for k in range(4): a(f"v_mul_f32 v{GG+k}, v12, v{GG+k}")
    for k in range(4): a(f"v_fmac_f32 v{GG+k}, v13, v{GG+4+k}")
    a(f"""
    v_permlane32_swap_b32 v{GG}, v{GG+2}
    v_permlane32_swap_b32 v{GG+1}, v{GG+3}
    v_add_f32 v{GG}, v{GG}, v{GG+2}
    v_add_f32 v{GG+1}, v{GG+1}, v{GG+3}
    v_permlane16_swap_b32 v{GG}, v{GG+1}
    v_add_f32 v{GG}, v{GG}, v{GG+1}
    v_cvt_pk_bf16_f32 v{GG}, v{GG}, v{GG}
    ds_write_b16 v15, v{GG} offset:{L_GO}
    ds_read_b128 v[{GP}:{GP+3}], v14 offset:{L_GO}
    s_waitcnt lgkmcnt(0)
    """)
    a.label("L_Gdot")
    for k in range(4):
        for t in range(4):
            a(f"v_dot2c_f32_bf16 {A(2*t)}, v{GW+8*k+t}, v{GP+k}\nv_dot2c_f32_bf16 {A(2*t+1)}, v{88+4*k+t}, v{GP+k}")
    for e in range(4): a(f"v_permlane32_swap_b32 {A(e)}, {A(e+4)}")
    for e in range(4): a(f"v_add_f32 {A(e)}, {A(e)}, {A(e+4)}")
    for e in range(2): a(f"v_permlane16_swap_b32 {A(e)}, {A(e+2)}")
    for e in range(2): a(f"v_add_f32 {A(e)}, {A(e)}, {A(e+2)}")
    a(f"""
    v_add_f32_dpp v{GO}, {A(0)}, {A(0)} row_ror:8 row_mask:0xf bank_mask:0xf
    v_add_f32_dpp v{GO+2}, {A(1)}, {A(1)} row_ror:8 row_mask:0xf bank_mask:0xf
    s_mov_b64 exec, s[62:63]
    {"" if 'T' in no else f"buffer_store_dwordx4 v[{GO}:{GO+3}], v10, s[8:11], s57 offen sc1"}
    """)
    stamp(11); ampmark("gs")
    if 'T' in no or 'R' in no: a("s_branch L_Gend")
    if rd2:
        a(f"""
        s_cmp_eq_u32 s76, -1
        s_cbranch_scc1 L_Gend
        s_mov_b64 exec, -1
        s_mov_b32 s58, {SPIN}
        """)
        a.label("L_ry")
        if rsleep: a(f"s_sleep {rsleep}")
        a(f"""
        buffer_load_dwordx4 v[24:27], v104, s[64:67], s68 offen sc1
        buffer_load_dwordx4 v[28:31], v104, s[64:67], s69 offen sc1
        buffer_load_dwordx4 v[32:35], v104, s[64:67], s70 offen sc1
        s_sub_u32 s58, s58, 1
        s_waitcnt vmcnt(0)
        s_cbranch_scc1 L_ryx
        v_xor_b32 v2, v25, v{GO+1}
        v_xor_b32 v3, v33, v107
        v_bitop3_b32 v2, v27, v{GO+1}, v2 bitop3:0xbe
        v_bitop3_b32 v3, v35, v107, v3 bitop3:0xbe
        v_bitop3_b32 v2, v29, v{GO+1}, v2 bitop3:0xbe
        v_bitop3_b32 v3, v31, v{GO+1}, v3 bitop3:0xbe
        v_or_b32 v2, v2, v3
        v_cmp_ne_u32 vcc, 0, v2
        s_and_b64 exec, exec, vcc
        s_cbranch_execnz L_ry
        """)
        a.label("L_ryx")
        a("s_mov_b64 exec, -1")
        stamp(12)
        a(f"""
        v_permlane32_swap_b32 v32, v34
        v_add_f32 v24, v24, v28
        v_add_f32 v26, v26, v30
        v_add_f32 v32, v32, v34
        v_mov_b32 v33, v32
        v_permlane32_swap_b32 v24, v26
        v_add_f32 v24, v24, v26
        v_permlane16_swap_b32 v32, v33
        v_mov_b32 v25, v24
        v_add_f32 v32, v32, v33
        s_nop 0
        v_permlane16_swap_b32 v24, v25
        v_add_f32_dpp v32, v32, v32 row_ror:8 row_mask:0xf bank_mask:0xf
        v_add_f32 v24, v24, v25
        v_add_f32_dpp v32, v32, v32 row_ror:4 row_mask:0xf bank_mask:0xf
        v_add_f32_dpp v24, v24, v24 row_ror:8 row_mask:0xf bank_mask:0xf
        v_add_f32_dpp v32, v32, v32 row_ror:2 row_mask:0xf bank_mask:0xf
        v_add_f32_dpp v24, v24, v24 row_ror:4 row_mask:0xf bank_mask:0xf
        v_cvt_pk_bf16_f32 v32, 0, v32
        v_mul_f32 v2, 0xbfb8aa3b, v32
        v_add_f32_dpp v24, v24, v24 row_ror:2 row_mask:0xf bank_mask:0xf
        v_exp_f32 v2, v2
        v_cvt_pk_bf16_f32 v24, 0, v24
        v_add_f32 v2, 1.0, v2
        v_rcp_f32 v2, v2
        s_mov_b64 exec, s[78:79]
        v_mul_f32 v2, v32, v2
        v_cvt_pk_bf16_f32 v2, 0, v2
        v_mul_f32 v2, v24, v2
        v_cvt_pk_bf16_f32 v2, 0, v2
        v_add_f32 v2, v106, v2
        v_cvt_pk_bf16_f32 v2, v2, v2
        buffer_store_short v2, v105, s[72:75], s71 offen
        s_cmp_lg_u32 s76, 0
        s_cbranch_scc1 L_rnb
        s_mov_b64 exec, 1
        buffer_store_dword v{GO+1}, v7, s[8:11], 0 offen sc1
        """)
    else:
        a(f"""
        s_sub_u32 s48, s5, 5
        s_cmp_ge_u32 s48, 2
        s_cbranch_scc1 L_Gend
        s_cmp_ge_u32 s4, 20
        s_cbranch_scc1 L_Gend
        s_mov_b64 exec, -1
        s_lshl_b32 s6, s4, 3
        s_add_u32 s6, s6, s49
        s_mov_b32 s40, s8
        s_mov_b32 s41, s9
        s_mov_b32 s42, {WS_T+160*3072 if inbox else T_END}
        s_mov_b32 s44, s16
        s_mov_b32 s45, s17
        s_mov_b32 s46, 1280
        v_lshrrev_b32 v3, 1, v0
        v_and_b32 v4, 1, v0
        v_mul_u32_u24 v3, {TSL}, v3
        v_lshl_add_u32 v8, v4, 4, v3
        s_mul_i32 s48, s6, {3072 if inbox else 32}
        s_add_u32 s52, s48, {WS_T}
        s_add_u32 s53, s48, {WS_T+32*TSL}
        s_add_u32 s54, s48, {WS_T+ZB}
        v_lshrrev_b32 v3, 5, v0
        v_lshl_add_u32 v4, v4, 1, v3
        v_lshlrev_b32 v9, 1, v4
        s_lshl_b32 s55, s6, 3
        buffer_load_ushort v10, v9, s[44:47], s55 offen
        v_mov_b32 v32, 0
        v_mov_b32 v34, 0
        s_mov_b32 s44, s34
        s_mov_b32 s45, s35
        s_mov_b32 s58, {SPIN}
        s_mov_b32 s56, 3
        s_mov_b32 s57, 3
        s_mov_b32 exec_hi, 0x3fffff
        """)
        a.label("L_rz")
        if zsleep: a(f"s_sleep {zsleep}")
        a(f"""
        buffer_load_dwordx4 v[32:35], v8, s[40:43], s54 offen sc1
        s_sub_u32 s58, s58, 1
        s_waitcnt vmcnt(0)
        s_cbranch_scc1 L_rzx
        v_xor_b32 v2, v33, v{GO+1}
        v_bitop3_b32 v2, v35, v{GO+1}, v2 bitop3:0xbe
        v_cmp_ne_u32 vcc, 0, v2
        s_and_b64 exec, exec, vcc
        s_cbranch_execnz L_rz
        """)
        a.label("L_rzx")
        a(f"""
        s_mov_b64 exec, -1
        buffer_load_dwordx4 v[24:27], v8, s[40:43], s52 offen sc1
        buffer_load_dwordx4 v[28:31], v8, s[40:43], s53 offen sc1
        v_permlane32_swap_b32 v32, v34
        v_lshlrev_b32 v10, 16, v10
        v_add_f32 v32, v32, v34
        v_mov_b32 v33, v32
        v_permlane16_swap_b32 v32, v33
        v_add_f32 v32, v32, v33
        """)
        for r in (8, 4, 2): a(f"v_add_f32_dpp v32, v32, v32 row_ror:{r} row_mask:0xf bank_mask:0xf")
        a(f"""
        v_cvt_pk_bf16_f32 v32, 0, v32
        v_mul_f32 v2, 0xbfb8aa3b, v32
        v_exp_f32 v2, v2
        v_add_f32 v2, 1.0, v2
        v_rcp_f32 v2, v2
        v_mul_f32 v2, v32, v2
        v_cvt_pk_bf16_f32 v12, 0, v2
        s_mov_b32 s58, {SPIN}
        """)
        def yload(b):
            a(f"buffer_load_dwordx4 v[{b}:{b+3}], v8, s[40:43], s52 offen sc1\nbuffer_load_dwordx4 v[{b+4}:{b+7}], v8, s[40:43], s53 offen sc1")
        def ycheck(b):
            a(f"""
            v_xor_b32 v2, v{b+1}, v{GO+1}
            v_xor_b32 v3, v{b+5}, v{GO+1}
            v_bitop3_b32 v2, v{b+3}, v{GO+1}, v2 bitop3:0xbe
            v_bitop3_b32 v3, v{b+7}, v{GO+1}, v3 bitop3:0xbe
            v_or_b32 v2, v2, v3
            v_cmp_ne_u32 vcc, 0, v2
            """)
        if not dual:
            a("s_branch L_ryc")
            a.label("L_ry")
            if rsleep: a(f"s_sleep {rsleep}")
            yload(24)
            a.label("L_ryc")
            a("s_sub_u32 s58, s58, 1\ns_waitcnt vmcnt(0)\ns_cbranch_scc1 L_ryx")
            ycheck(24)
            a("s_and_b64 exec, exec, vcc\ns_cbranch_execnz L_ry")
            a.label("L_ryx")
            a("s_mov_b64 exec, -1")
            stamp(12)
            a("v_add_f32 v24, v24, v28\nv_add_f32 v26, v26, v30")
        else:
            yload(36)
            a("s_mov_b64 s[64:65], -1\ns_mov_b64 s[66:67], -1")
            a.label("L_ry")
            a("s_sub_u32 s58, s58, 1\ns_waitcnt vmcnt(2)\ns_cbranch_scc1 L_ryA\ns_mov_b64 exec, s[64:65]")
            ycheck(24)
            a("s_and_b64 exec, exec, vcc\ns_cbranch_execz L_ryA\ns_mov_b64 s[64:65], exec")
            yload(24)
            a("s_waitcnt vmcnt(2)\ns_mov_b64 exec, s[66:67]")
            ycheck(36)
            a("s_and_b64 exec, exec, vcc\ns_cbranch_execz L_ryB\ns_mov_b64 s[66:67], exec")
            yload(36)
            a("s_branch L_ry")
            a.label("L_ryB")
            a("s_mov_b64 exec, -1\nv_add_f32 v44, v36, v40\nv_add_f32 v46, v38, v42\ns_branch L_ryx")
            a.label("L_ryA")
            a("s_mov_b64 exec, -1\nv_add_f32 v44, v24, v28\nv_add_f32 v46, v26, v30")
            a.label("L_ryx")
            stamp(12)
        Y = 44 if dual else 24
        a(f"""
        s_nop 0
        v_permlane32_swap_b32 v{Y}, v{Y+2}
        v_add_f32 v{Y}, v{Y}, v{Y+2}
        v_mov_b32 v{Y+1}, v{Y}
        v_permlane16_swap_b32 v{Y}, v{Y+1}
        v_add_f32 v{Y}, v{Y}, v{Y+1}
        """)
        for r in (8, 4, 2): a(f"v_add_f32_dpp v{Y}, v{Y}, v{Y} row_ror:{r} row_mask:0xf bank_mask:0xf")
        a(f"""
        v_cvt_pk_bf16_f32 v{Y}, 0, v{Y}
        v_mul_f32 v2, v{Y}, v12
        v_cvt_pk_bf16_f32 v2, 0, v2
        v_add_f32 v2, v10, v2
        v_cvt_pk_bf16_f32 v2, v2, v2
        s_mov_b64 exec, s[56:57]
        buffer_store_short v2, v9, s[44:47], s55 offen {outsc}
        s_cmp_lg_u32 s6, 0
        s_cbranch_scc1 L_rnb
        s_mov_b64 exec, 1
        buffer_store_dword v{GO+1}, v7, s[8:11], 0 offen sc1
        """)
    if amp:
        ampmark("end")
        a("""
        s_memrealtime s[94:95]
        s_waitcnt lgkmcnt(0)
        s_sub_u32 s92, s92, s90
        s_mul_i32 s92, s92, 4
        s_min_u32 s92, s92, 100000
        s_add_u32 s94, s94, s92
        """)
        a.label("L_amp")
        a("""
        s_memrealtime s[96:97]
        s_waitcnt lgkmcnt(0)
        s_sub_u32 s92, s96, s94
        s_cmp_lt_i32 s92, 0
        s_cbranch_scc1 L_amp
        """)
    a.label("L_rnb")
    if warm: a.pad_end("L_wback")
    if stamps:
        a("s_waitcnt vmcnt(0)")
        stamp(13)
    a.label("L_Gend")
    if stamps:
        a("s_movk_i32 s48, 0xf1f\ns_cmp_ge_u32 s5, 5\ns_cselect_b32 s48, 0x301f, s48\ns_cmp_lg_u32 s3, 0\ns_cselect_b32 s48, 0x401e, s48")
        if sset == 1: a("s_bitcmp1_b32 s98, 1\ns_cselect_b32 s49, 0x1f1e, 0\ns_and_b32 s48, s48, 1\ns_or_b32 s48, s48, s49")
        flush_stamps("s48")
    a.label("L_end")
    a("s_endpgm")
    a.label("L_Amix")
    a(f"""
    buffer_store_dwordx2 v[2:3], v9, s[8:11], s54 offen sc1
    s_mov_b64 exec, s[62:63]
    buffer_store_dwordx4 v[44:47], v1, s[8:11], s55 offen sc1
    s_mov_b64 exec, -1
    s_mov_b32 s6, s50
    s_mov_b32 s58, {SPIN}
    v_mov_b32 v4, 2
    s_waitcnt vmcnt(0)
    s_atomic_swap s6, s[8:9], s49 offset:32
    """)
    a.label("L_Amp")
    a(f"""
    s_sleep {a2sleep}
    s_load_dwordx8 s[64:71], s[8:9], s52 offset:32 glc
    s_sub_u32 s58, s58, 1
    s_cbranch_scc1 L_Amg
    s_waitcnt lgkmcnt(0)
    """)
    for k in range(4): a(f"s_cmp_eq_u64 s[{64+2*k}:{65+2*k}], s[50:51]\ns_cbranch_scc0 L_Amp")
    a.label("L_Amg")
    for k in range(4): a(f"buffer_load_dwordx4 v[{24+4*k}:{27+4*k}], v1, s[8:11], s53 offen offset:{1024*k} sc1")
    a("s_branch L_A2s")

    a.raw(".p2align 6")
    a.label("L_KV")
    K0, V0 = 24, 88
    a(f"""
    s_setprio 1
    s_mov_b32 s42, 0x100000
    s_mov_b32 s46, 0x100000
    s_lshl_b32 s48, s4, 23
    s_add_u32 s48, s48, {28672*256}
    s_sub_u32 s6, s3, 4
    """)
    if hmul is None:
        kmask, kstep = 0x1ffff, 8192 * blk
        a(f"s_lshl_b32 s50, s5, 17\ns_add_u32 s48, s48, s50\ns_mul_i32 s49, s2, {rotmul}\ns_add_u32 s49, s49, s3\ns_mov_b32 s42, 0x20000\ns_mov_b32 s46, 0x20000")
    else:
        kmask, kstep = 0xfffff, 65536 * blk
        a(f"s_mul_i32 s49, s4, {hmul}\ns_lshl_b32 s50, s5, 3\ns_add_u32 s49, s49, s50\ns_add_u32 s49, s49, s6")
    a(f"""
    s_mul_i32 s52, s49, {1024*blk}
    s_and_b32 s52, s52, {kmask}
    s_mov_b32 s60, 0xcccccccc
    s_mov_b32 s61, 0xcccccccc
    s_mov_b32 s62, 0xaaaaaaaa
    s_mov_b32 s63, 0xaaaaaaaa
    v_and_b32 v3, 15, v0
    v_lshrrev_b32 v4, 4, v0
    v_lshlrev_b32 v5, 5, v3
    v_lshl_or_b32 v6, v4, 3, v5
    v_lshlrev_b32 v3, 4, v3
    s_mul_i32 s51, s5, {OBS}
    s_add_u32 s51, s51, s12
    s_add_u32 s51, s51, {WS_OB}
    """)
    for e in range(8): a(f"v_mov_b32 v{ACC+e}, 0")
    a(f"""
    s_waitcnt lgkmcnt(0)
    s_add_u32 s40, s18, s48
    s_addc_u32 s41, s19, 0
    s_add_u32 s44, s20, s48
    s_addc_u32 s45, s21, 0
    """)
    if tlb:
        a(f"""
        s_cmp_lg_u32 s6, 0
        s_cbranch_scc1 L_notlb
        s_mul_i32 s50, s4, {128*1280}
        s_add_u32 s64, s24, s50
        s_addc_u32 s65, s25, 0
        s_min_u32 s50, s4, 26
        s_mul_i32 s50, s50, {64*1280}
        s_add_u32 s66, s32, s50
        s_addc_u32 s67, s33, 0
        v_mov_b32 v12, s44
        v_mov_b32 v13, s45
        v_writelane_b32 v12, s40, 1
        v_writelane_b32 v13, s41, 1
        v_writelane_b32 v12, s64, 2
        v_writelane_b32 v13, s65, 2
        v_writelane_b32 v12, s66, 3
        v_writelane_b32 v13, s67, 3
        v_writelane_b32 v12, s8, 4
        v_writelane_b32 v13, s9, 4
        v_writelane_b32 v12, s34, 5
        v_writelane_b32 v13, s35, 5
        s_mov_b64 exec, {tlb}
        global_load_dword v14, v[12:13], off nt
        s_mov_b64 exec, -1
        """)
        a.label("L_notlb")
    if not kpre: a("s_barrier")
    if bal is not None:
        a(f"s_and_b32 s48, s2, 1\ns_mul_i32 s48, s48, {bal}\ns_cmp_lt_u32 s6, s48\ns_cselect_b64 vcc, 0, -1")
        depth0 = depth; depth = depth + 1
    if fc:
        assert max(fc["cp"]) < 16 + qpos + 3
        a("v_mov_b32 v15, 1")
    T = lambda i: f"v{K0+4*i}"
    def w_q():
        stamp(8, 2)
        lds_spin(L_QF, 1, sleep=1)
        a("s_mov_b32 s7, s48")
        stamp(9, 2)
        a(f"ds_read_b128 v[8:11], v3 offset:{L_Q}\ns_waitcnt lgkmcnt(0)")
        for i in range(16): a(f"v_dot2_f32_bf16 {T(i)}, {T(i)}, v8, 0")
        for i in range(16): a(f"v_dot2c_f32_bf16 {T(i)}, v{K0+4*i+1}, v9")
    def w_s2():
        for t in range(2, 4):
            for i in range(16): a(f"v_dot2c_f32_bf16 {T(i)}, v{K0+4*i+t}, v{8+t}")
    def w_s3():
        for k in range(8): a(f"v_add_f32_dpp {T(k)}, {T(k)}, {T(k)} row_ror:8 row_mask:0xf bank_mask:0x3")
        for k in range(8): a(f"v_add_f32_dpp {T(k)}, {T(k+8)}, {T(k+8)} row_ror:8 row_mask:0xf bank_mask:0xc")
        for k in range(4): a(f"v_add_f32_dpp {T(k)}, {T(k)}, {T(k)} row_shl:4 row_mask:0xf bank_mask:0x5")
        for k in range(4): a(f"v_add_f32_dpp {T(k)}, {T(k+4)}, {T(k+4)} row_shr:4 row_mask:0xf bank_mask:0xa")
        for k in range(4): a(f"v_add_f32_dpp {T(k)}, {T(k)}, {T(k)} quad_perm:[2,3,0,1] row_mask:0xf bank_mask:0xf")
        for k in range(2): a(f"v_cndmask_b32 {T(k)}, {T(k)}, {T(k+2)}, s[60:61]")
        for k in range(2): a(f"v_add_f32_dpp {T(k)}, {T(k)}, {T(k)} quad_perm:[1,0,3,2] row_mask:0xf bank_mask:0xf")
        a(f"""
        v_cndmask_b32 v2, {T(0)}, {T(1)}, s[62:63]
        v_cvt_pk_bf16_f32 v2, 0, v2
        v_mul_f32 v2, {SCALE}, v2
        v_cvt_pk_bf16_f32 v2, 0, v2
        v_mul_f32 v2, {LOG2E}, v2
        v_mov_b32 v14, v2
        """)
    def w_s4():
        allreduce("v_max_f32", "v14", "v3")
        a(f"""
        v_sub_f32 v2, v2, v14
        v_exp_f32 v2, v2
        s_lshl_b32 s48, s6, 3
        v_mov_b32 v4, s48
        v_mov_b32 v15, v2
        v_cvt_pk_bf16_f32 v12, v2, 0
        v_cvt_pk_bf16_f32 v13, 0, v2
        """)
        allreduce("v_add_f32", "v15", "v3")
        a(f"""
        v_mov_b32 v9, 1
        s_mov_b64 exec, 1
        ds_write_b64 v4, v[14:15] offset:{L_POST}
        ds_add_u32 v7, v9 offset:{L_C1}
        s_mov_b64 exec, -1
        """)
        stamp(6)
    def pv(i):
        for t in range(4):
            a(f"v_dot2c_f32_bf16_dpp v{ACC+2*t}, v12, v{V0+4*i+t} row_newbcast:{i} row_mask:0xf bank_mask:0xf")
            a(f"v_dot2c_f32_bf16_dpp v{ACC+2*t+1}, v13, v{V0+4*i+t} row_newbcast:{i} row_mask:0xf bank_mask:0xf")
    chunks = [w_q, w_s2, w_s3, w_s4]
    assert depth - 1 <= qpos <= 11
    pv_done = 0
    for n in range(32):
        if kpre and n == kpre: a("s_barrier")
        if dsched and n in dsched: depth = dsched[n]
        t, i = divmod(n, 16)
        r = (K0, V0)[t] + 4 * i
        srd = ("s[40:43]", "s[44:47]")[t]
        if warm and warmkv and n == 12: a.pad_start("PK1", warm)
        if warm and warmkv and n == 16 + qpos + 5:
            a.pad_end("L_wback"); a.pad_start("PK2", warm)
        if bal is not None and n >= depth0:
            if n < balfrom: a(f"s_waitcnt vmcnt({depth0-1})")
            else:
                L = a.newlabel("Lb")
                a(f"s_waitcnt vmcnt({depth-1})\ns_cbranch_vccz {L}\ns_waitcnt vmcnt({depth0-1})")
                a.label(L)
        elif fc and n > fc["cp"][0] + 1:
            L = a.newlabel("Lf")
            a(f"s_waitcnt vmcnt({depth-1}) lgkmcnt(0)\nv_readfirstlane_b32 s53, v5\ns_cmp_gt_u32 s53, {n}\ns_cbranch_scc0 {L}\ns_waitcnt vmcnt({fc['dlow']-1})")
            a.label(L)
        elif n >= depth: a(f"s_waitcnt vmcnt({depth-1})")
        a(f"buffer_load_dwordx4 v[{r}:{r+3}], v1, {srd}, s52 offen offset:{(i%blk)*1024} nt")
        if fc and fc["cp"][0] + 1 <= n < 31: a(f"ds_read_b32 v5, v7 offset:{L_HOLD}")
        if fc and n in fc["cp"]: a(f"s_mov_b64 exec, 1\nds_add_u32 v7, v15 offset:{L_PC}\ns_mov_b64 exec, -1")
        if sset == 4 and n in (4, 6, 8, 12, 16, 20, 24, 28): stamp({4:1, 6:2, 8:3, 12:4, 16:8, 20:9, 24:10, 28:11}[n], 4)
        if n < 31 and (i % blk) == blk - 1: a(f"s_add_u32 s52, s52, {kstep}\ns_and_b32 s52, s52, {kmask}")
        if n == ispos:
            assert not chunks
            a(f"s_mov_b64 exec, 1\nds_add_u32 v7, v9 offset:{L_IS}\ns_mov_b64 exec, -1")
        if n == 31:
            stamp(5)
            break
        if n >= 16 + qpos:
            if chunks: chunks.pop(0)()
            else:
                avail = n - depth - 16 + 1
                k = max(pv_done, min(avail, pv_done + 4))
                for q in range(pv_done, k): pv(q)
                pv_done = k
    a("v_and_b32 v3, 7, v0\nv_lshlrev_b32 v3, 3, v3")
    stamp(10, 2)
    lds_spin(L_C1, 8, sleep=1)
    stamp(11, 2)
    a(f"""
    ds_read_b32 v2, v3 offset:{L_POST}
    s_waitcnt lgkmcnt(0)
    """)
    for r in (4, 2, 1): a(f"v_max_f32_dpp v2, v2, v2 row_ror:{r} row_mask:0xf bank_mask:0xf")
    a("v_sub_f32 v15, v14, v2\nv_exp_f32 v15, v15")
    a(f"""
    v_lshlrev_b32 v5, 3, v0
    s_lshl_b32 s49, s6, 9
    v_add_u32 v4, s49, v5
    """)
    stamp(12, 2)
    for q in range(pv_done, 16):
        if q >= 16 - depth: a(f"s_waitcnt vmcnt({15-q})")
        pv(q)
    stamp(15); stamp(15, 2); stamp(15, 4)
    for e in range(4): a(f"v_permlane32_swap_b32 {A(e)}, {A(e+4)}")
    for e in range(4): a(f"v_add_f32 {A(e)}, {A(e)}, {A(e+4)}")
    for e in range(2): a(f"v_permlane16_swap_b32 {A(e)}, {A(e+2)}")
    for e in range(2): a(f"v_add_f32 {A(e)}, {A(e)}, {A(e+2)}")
    a(f"""
    v_mul_f32 {A(0)}, {A(0)}, v15
    v_mul_f32 {A(1)}, {A(1)}, v15
    ds_write_b64 v4, v[{ACC}:{ACC+1}] offset:{L_OACC}
    s_mov_b64 exec, 1
    ds_add_rtn_u32 v2, v7, v9 offset:{L_C2}
    s_mov_b64 exec, -1
    """)
    rd = f"""
    ds_read2st64_b64 v[24:27], v5 offset0:{L_OACC//512} offset1:{L_OACC//512+1}
    ds_read2st64_b64 v[28:31], v5 offset0:{L_OACC//512+2} offset1:{L_OACC//512+3}
    ds_read2st64_b64 v[32:35], v5 offset0:{L_OACC//512+4} offset1:{L_OACC//512+5}
    ds_read2st64_b64 v[36:39], v5 offset0:{L_OACC//512+6} offset1:{L_OACC//512+7}
    """
    if spec: a(rd + "s_waitcnt lgkmcnt(4)" if not stamps or True else "")
    else: a("s_waitcnt lgkmcnt(0)")
    a(f"""
    v_readfirstlane_b32 s48, v2
    s_cmp_lg_u32 s48, 7
    s_cbranch_scc1 L_notlast
    """)
    if not spec: a(rd)
    a(f"""
    s_waitcnt lgkmcnt(2)
    v_pk_add_f32 v[24:25], v[24:25], v[26:27]
    v_pk_add_f32 v[28:29], v[28:29], v[30:31]
    v_pk_add_f32 v[24:25], v[24:25], v[28:29]
    s_waitcnt lgkmcnt(0)
    v_pk_add_f32 v[32:33], v[32:33], v[34:35]
    v_pk_add_f32 v[36:37], v[36:37], v[38:39]
    v_pk_add_f32 v[24:25], v[24:25], v[32:33]
    v_pk_add_f32 v[24:25], v[24:25], v[36:37]
    """)
    mstore("buffer_store_dwordx2 v[24:25], v6, s[8:11], s51 offen")
    a(f"ds_write_b32 v7, v9 offset:{L_OPF}")
    if warm and warmkv: a.pad_end("L_wback")
    stamp(7); flush_stamps("0xfffe")
    a("s_endpgm")
    a.label("L_notlast")
    a.label("L_end3")
    flush_stamps("0x4000" if sset == 0 else "0")
    a.label("L_last")
    a("s_endpgm")
    nv = 160 if stamps else 152
    a.raw('.section .rodata,"a"'); a.raw(".p2align 6"); a.raw(f".amdhsa_kernel {KN}")
    a.raw(f"  .amdhsa_next_free_vgpr {nv}"); a.raw("  .amdhsa_next_free_sgpr 100"); a.raw(f"  .amdhsa_accum_offset {(nv+3)//4*4}")
    a.raw("  .amdhsa_group_segment_fixed_size 0"); a.raw("  .amdhsa_kernarg_size 96"); a.raw("  .amdhsa_user_sgpr_count 2")
    a.raw("  .amdhsa_user_sgpr_kernarg_segment_ptr 1"); a.raw("  .amdhsa_system_sgpr_workgroup_id_x 1"); a.raw(".end_amdhsa_kernel")
    open(path, "w").write(a.text())

if __name__ == "__main__":
    F=[0,2,4]
    gen("f0.s", ftab=F)
    gen("f1.s", ftab=F, xpos=2)
    gen("f2.s", ftab=F, xpos=5)
    gen("f3.s", ftab=F, kpre=1)
    gen("f4.s", ftab=F, kpre=2)
    gen("f5.s", ftab=F, kpre=4)
    gen("f6.s", ftab=F, cpf=False)
```

```python
import gen15 as g, sys
P=dict(ftab=[0,2,4], pfl="sc1", blk=4, hmul=4, gdepth=5, xpos=5, qpos=7, dual=True, SPIN=2000000)
doc='''; ---------------------------------------------------------------------------------------------
;  write-through; the cross-group partial sums always travel write-through as {value,tag} pairs.
; ---------------------------------------------------------------------------------------------
'''
g.gen("v4.s", **P)
g.gen("v4lin.s", xmap=0, **P)
g.gen("v4fm.s", forcemixed=True, **P)
s=open("v4.s").read()
i=s.index(".amdgcn_target")
open("recurrent_scan__sliding_block_cached__swiglu_ffn__decode.s","w").write(s[:i]+doc+s[i:])
```

```python
import sys
sys.path.insert(0, "gen")
from asmlib import Asm
KN = "recurrent_scan__sliding_block_cached__swiglu_ffn__decode_kernel"
HDR = open("recurrent_scan__sliding_block_cached__swiglu_ffn__decode.s.ref").read().split("; Override launch")[0]

GS = 3 * 4096 + 256
WS_E, WS_G = 0, 0x1000
WS_OA, WS_OB, WS_F = WS_G, WS_G + 4096, WS_G + 9216
OBS = 640
WS_T = 0x80000
TS = 5120
T_END = WS_T + 91 * TS
L_QF, L_C1, L_C2, L_TAG, L_OPF, L_CA, L_IS, L_PC, L_HOLD, L_POST = 0, 4, 8, 12, 16, 20, 24, 28, 32, 64
L_Q, L_H, L_AACC, L_OACC = 256, 512, 1024, 2048
L_GO = L_AACC
LDS_BYTES = 6144
LOG2E = "0x3fb8aa3b"
SCALE = "0x3db504f3"

def gen(path, stamps=False, rotmul=5, a2sleep=8, sset=0, cpf=True, gwait=8, perwave=False, depth=4, qpos=8, gdepth=4,
        blk=1, xmap=2, SPIN=20000, forcemixed=False, ispos=31, zfirst=True, psleep=0, pfl='sc1', gpre=0, gpd=1, zwait=0, no='', warm=0, warmkv=True, amp=None, gstep=0, spec=True, hmul=None, inbox=False, dual=False, outsc='', apat=0, gpat=0, bal=None, balfrom=4, ftab=None, dsched=None, abar=None, adepth=None, tlb=0, fc=None, rd2=False, rsleep=0, zsleep=0, xpos=0, kpre=0, flate=0):
    a = Asm()
    a.raw(HDR.rstrip())
    a.raw(f"; @launch grid=(256,1,1) block=(768,1,1) lds={LDS_BYTES}")
    if perwave: a.raw("; nstamp=3072")
    a.raw('.amdgcn_target "amdgcn-amd-amdhsa--gfx950"')
    a.raw(".text"); a.raw(f".globl {KN}"); a.raw(".p2align 8"); a.raw(f".type {KN},@function"); a.raw(f"{KN}:")
    def stamp(i, ss=0):
        if stamps and (ss == sset or (ss == 0 and (i < 8 or i == 13 or sset == 3))):
            a(f"s_memrealtime s[96:97]\ns_waitcnt lgkmcnt(0)\ns_mov_b32 s{80+i}, s96\ns_bitset1_b32 s98, {i}")
    def flush_stamps(mask):
        if not stamps: return
        a("s_mov_b64 exec, -1\nv_lshlrev_b32 v154, 3, v0\nv_mov_b32 v153, 0")
        if perwave:
            a("s_mul_i32 s59, s2, 12\ns_add_u32 s59, s59, s3\ns_lshl_b32 s59, s59, 7\ns_add_u32 s59, s59, 0x20000000")
            mask = "0xffff"
        else:
            a("s_lshl_b32 s59, s2, 7\ns_add_u32 s59, s59, 0x20000000")
        for i in range(16): a(f"v_writelane_b32 v152, s{80+i}, {i}")
        L = a.newlabel("Lfl")
        a(f"s_and_b32 s98, s98, {mask}\ns_mov_b32 s99, 0\ns_cbranch_scc0 {L}\ns_mov_b64 exec, s[98:99]\nbuffer_store_dwordx2 v[152:153], v154, s[8:11], s59 offen")
        a.label(L)
    def allreduce(op, v, t):
        for r in (8, 4, 2, 1):
            a(f"{op}_dpp {v}, {v}, {v} row_ror:{r} row_mask:0xf bank_mask:0xf")
        a(f"v_mov_b32 {t}, {v}\nv_permlane16_swap_b32 {t}, {v}\n{op} {v}, {t}, {v}")
        a(f"v_mov_b32 {t}, {v}\nv_permlane32_swap_b32 {t}, {v}\n{op} {v}, {t}, {v}")
    def lds_spin(off, val, sleep=2):
        L = a.newlabel("Lsp"); X = a.newlabel("Lspx")
        a(f"s_mov_b32 s58, {SPIN}")
        a.label(L)
        a(f"ds_read_b32 v2, v7 offset:{off}\ns_waitcnt lgkmcnt(0)\nv_readfirstlane_b32 s48, v2\ns_cmp_ge_u32 s48, {val}\ns_cbranch_scc1 {X}")
        a((f"s_sleep {sleep}\n" if sleep else "") + f"s_sub_u32 s58, s58, 1\ns_cbranch_scc0 {L}")
        a.label(X)
    def mstore(text):
        L = a.newlabel("Lms"); X = a.newlabel("Lmx")
        a(f"s_cmp_eq_u32 s7, 1\ns_cbranch_scc0 {L}\n{text}\ns_branch {X}")
        a.label(L)
        a(f"{text} sc1")
        a.label(X)
    ACC = 16
    A = lambda e: f"v{ACC+e}"

    if stamps:
        a("s_mov_b32 s98, 0")
        stamp(0)
    if amp: a("s_memrealtime s[90:91]")
    def ampmark(name):
        if amp == name: a("s_memrealtime s[92:93]\ns_waitcnt lgkmcnt(0)")
    a(f"""
    s_cmp_ge_u32 s2, 256
    s_cbranch_scc1 L_end
    s_load_dwordx16 s[16:31], s[0:1], 0
    s_load_dwordx4 s[32:35], s[0:1], 64
    s_load_dwordx2 s[8:9], s[0:1], 88
    """)
    if cpf:
        a("v_lshlrev_b32 v2, 7, v0\ns_getpc_b64 s[48:49]")
        a.label("L_pc")
        a(f"""
        v_cmp_gt_u32 vcc, L_last-L_pc, v2
        s_and_saveexec_b64 s[50:51], vcc
        s_cbranch_execz L_nocpf
        global_load_dword v151, v2, s[48:49]
        """)
        a.label("L_nocpf")
        a("s_mov_b64 exec, -1")
    a(f"""
    v_lshrrev_b32 v1, 6, v0
    v_and_b32 v0, 63, v0
    v_readfirstlane_b32 s3, v1
    v_lshlrev_b32 v1, 4, v0
    v_mov_b32 v7, 0
    """)
    if xmap == 2:
        a("s_bfe_u32 s5, s2, 0x30003\ns_lshr_b32 s4, s2, 6\ns_lshl_b32 s4, s4, 3\ns_and_b32 s6, s2, 7\ns_add_u32 s4, s4, s6")
    else:
        a("s_lshr_b32 s4, s2, 3\ns_add_u32 s5, s2, s4\ns_and_b32 s5, s5, 7")
    a(f"""
    s_mov_b32 s43, 0x20000
    s_mov_b32 s47, 0x20000
    s_mov_b32 s10, 0x40000000
    s_mov_b32 s11, 0x20000
    s_mul_i32 s12, s4, {GS}
    s_cmp_ge_u32 s3, 4
    s_cbranch_scc1 L_KV
    """)
    W0 = 24
    a(f"""
    s_setprio 3
    v_mov_b32 v4, 0
    v_mov_b32 v5, 0
    v_mov_b32 v6, 0
    s_and_b32 s7, s5, 1
    ds_write_b128 v1, v[4:7]
    ds_write_b128 v1, v[4:7] offset:1024
    s_and_b32 s13, s3, 1
    s_and_b32 s14, s5, 6
    s_add_u32 s14, s14, s13
    s_mul_i32 s14, s14, 80
    v_mul_u32_u24 v2, 20, v0
    v_lshrrev_b32 v3, 3, v0
    v_mul_u32_u24 v4, 20, v3
    v_and_b32 v5, 7, v0
    v_lshlrev_b32 v6, 4, v5
    s_lshl_b32 s48, s14, 1
    s_mov_b32 s46, 1280
    """)
    if ftab is None: a("s_mov_b32 s36, s4")
    else:
        tab = 0
        for x in range(8): tab |= (ftab.index(x) if x in ftab else 7) << (4 * x)
        a(f"s_lshl_b32 s36, s4, 2\ns_lshr_b32 s36, {hex(tab)}, s36\ns_and_b32 s36, s36, 7\ns_add_u32 s36, s36, 24\ns_cmp_lt_u32 s4, 24\ns_cselect_b32 s36, s4, s36")
    a(f"""
    s_lshl_b32 s53, s36, 7
    s_lshl_b32 s54, s7, 7
    s_lshl_b32 s55, s4, 8
    s_add_u32 s54, s54, s55
    s_movk_i32 s52, 8192
    s_cmp_ge_u32 s3, 2
    s_cselect_b32 s52, 3456, s52
    s_cselect_b32 s53, s53, s54
    s_mul_i32 s42, s52, 640
    s_mul_i32 s49, s52, {1 if apat == 1 else 10}
    {'s_lshl_b32 s51, s52, 3' if apat == 1 else 's_mov_b32 s51, s52'}
    s_mul_i32 s54, s14, s52
    s_add_u32 s53, s53, s54
    v_mad_u32_u24 v6, v3, s49, v6
    """)
    if apat == 2:
        a("""
        v_mov_b32 v6, v1
        s_movk_i32 s51, 1024
        s_lshl_b32 s53, s4, 4
        s_lshl_b32 s54, s5, 1
        s_add_u32 s53, s53, s54
        s_add_u32 s53, s53, s13
        s_lshl_b32 s54, s36, 3
        s_and_b32 s55, s5, 6
        s_add_u32 s54, s54, s55
        s_add_u32 s54, s54, s13
        s_cmp_ge_u32 s3, 2
        s_cselect_b32 s53, s54, s53
        s_mul_i32 s53, s53, 10240
        """)
    if apat == 3:
        a("""
        s_cmp_ge_u32 s3, 2
        s_cbranch_scc1 L_ap3
        v_lshrrev_b32 v6, 4, v0
        v_mul_u32_u24 v6, 0x14000, v6
        v_and_b32 v8, 15, v0
        v_lshl_add_u32 v6, v8, 4, v6
        s_lshl_b32 s53, s5, 1
        s_add_u32 s53, s53, s13
        s_mul_i32 s53, s53, 0x50000
        s_lshl_b32 s54, s4, 8
        s_add_u32 s53, s53, s54
        """)
        a.label("L_ap3")
    a(f"""
    s_cmp_ge_u32 s36, 27
    s_cselect_b32 s15, 2, 4
    s_cmp_eq_u32 s7, 0
    s_waitcnt lgkmcnt(0)
    s_cselect_b32 s40, s28, s30
    s_cselect_b32 s41, s29, s31
    s_cmp_ge_u32 s3, 2
    s_cselect_b32 s40, s40, s22
    s_cselect_b32 s41, s41, s23
    s_mov_b32 s44, s16
    s_mov_b32 s45, s17
    """)
    if flate:
        a("""
        s_mov_b32 s72, s40
        s_mov_b32 s73, s41
        s_mov_b32 s74, s42
        s_mov_b32 s75, 0x20000
        s_mov_b32 s76, s53
        s_mov_b32 s77, s51
        v_mov_b32 v115, v6
        s_cmp_lt_u32 s3, s15
        s_cselect_b32 s37, 1, 0
        s_cmp_lt_u32 s3, 2
        s_cselect_b32 s37, 0, s37
        s_mov_b32 s15, 2
        """)
    a(f"""
    s_cmp_ge_u32 s3, s15
    s_cbranch_scc1 L_Anoload
    """)
    for i in range(10):
        if i == xpos:
            a("""
            buffer_load_dwordx4 v[104:107], v2, s[44:47], 0 offen
            buffer_load_dword v108, v2, s[44:47], 0 offen offset:16
            buffer_load_dwordx4 v[110:113], v4, s[44:47], s48 offen
            buffer_load_dword v114, v4, s[44:47], s48 offen offset:16
            """)
        a(f"buffer_load_dwordx4 v[{W0+4*i}:{W0+4*i+3}], v6, s[40:43], s53 offen nt")
        if i < 9: a("s_add_u32 s53, s53, s51")
    if abar is not None: a(f"s_waitcnt vmcnt({abar})")
    a.label("L_Anoload")
    a("s_barrier")
    ampmark("bar")
    stamp(8, 1)
    a(f"""
    s_load_dword s50, s[8:9], {WS_E}
    v_lshl_add_u32 v9, v5, 3, v3
    v_lshlrev_b32 v9, 3, v9
    v_lshlrev_b32 v8, 2, v0
    s_cmp_ge_u32 s3, s15
    s_cbranch_scc1 L_Adone
    s_mov_b32 s56, 0xffff0000
    s_mov_b32 s60, 0x05040100
    s_mov_b32 s61, 0x07060302
    s_lshl_b32 s49, s3, 8
    v_add_u32 v10, s49, v8
    """)
    for e in range(8): a(f"v_mov_b32 v{ACC+e}, 0")
    a(f"s_waitcnt vmcnt({12-xpos})")
    ampmark("x")
    stamp(9, 1)
    for k in range(5):
        a(f"v_lshlrev_b32 v{120+2*k}, 16, v{104+k}\nv_and_b32 v{121+2*k}, s56, v{104+k}")
    a("v_add_f32 v2, v120, v121")
    for k in range(2, 10): a(f"v_add_f32 v2, v2, v{120+k}")
    allreduce("v_add_f32", "v2", "v4")
    a("v_mul_f32 v2, 0x3acccccd, v2")
    for k in range(10): a(f"v_sub_f32 v{120+k}, v{120+k}, v2")
    a("v_mul_f32 v5, v120, v120")
    for k in range(1, 10): a(f"v_fmac_f32 v5, v{120+k}, v{120+k}")
    allreduce("v_add_f32", "v5", "v4")
    a(f"""
    v_mul_f32 v5, 0x3acccccd, v5
    v_cvt_pk_bf16_f32 v2, 0, v2
    v_cvt_pk_bf16_f32 v5, 0, v5
    v_add_f32 v5, 0x3727c5ac, v5
    v_cvt_pk_bf16_f32 v5, 0, v5
    v_sqrt_f32 v5, v5
    v_cvt_pk_bf16_f32 v5, 0, v5
    v_rcp_f32 v5, v5
    s_waitcnt vmcnt({10-xpos})
    """)
    for k in range(5):
        x = 110 + k
        a(f"""
        v_lshlrev_b32 v120, 16, v{x}
        v_and_b32 v121, s56, v{x}
        v_sub_f32 v120, v120, v2
        v_sub_f32 v121, v121, v2
        v_cvt_pk_bf16_f32 v120, 0, v120
        v_cvt_pk_bf16_f32 v121, 0, v121
        v_mul_f32 v120, v120, v5
        v_mul_f32 v121, v121, v5
        v_cvt_pk_bf16_f32 v{130+k}, v120, v121
        """)
    stamp(10, 1)
    for k in range(5):
        a(f"s_waitcnt vmcnt({8-2*k})")
        if k == 4: stamp(11, 1); stamp(11, 4)
        if k == 2: stamp(10, 4)
        for t in range(4):
            lo, hi = W0 + 8 * k + t, W0 + 8 * k + 4 + t
            a(f"v_perm_b32 v{140+t}, v{hi}, v{lo}, s61\nv_perm_b32 v{lo}, v{hi}, v{lo}, s60")
        for t in range(4):
            lo = W0 + 8 * k + t
            a(f"v_dot2c_f32_bf16 {A(2*t)}, v{lo}, v{130+k}\nv_dot2c_f32_bf16 {A(2*t+1)}, v{140+t}, v{130+k}")
    for e in range(4): a(f"v_permlane32_swap_b32 {A(e)}, {A(e+4)}")
    for e in range(4): a(f"v_add_f32 {A(e)}, {A(e)}, {A(e+4)}")
    for e in range(2): a(f"v_permlane16_swap_b32 {A(e)}, {A(e+2)}")
    for e in range(2): a(f"v_add_f32 {A(e)}, {A(e)}, {A(e+2)}")
    a(f"""
    v_add_f32_dpp {A(0)}, {A(0)}, {A(0)} row_ror:8 row_mask:0xf bank_mask:0x3
    v_add_f32_dpp {A(0)}, {A(1)}, {A(1)} row_ror:8 row_mask:0xf bank_mask:0xc
    ds_write_b32 v10, {A(0)} offset:{L_AACC}
    """)
    a.label("L_Adone")
    ampmark("adone")
    a(f"""
    v_mov_b32 v4, 1
    s_mov_b64 exec, 1
    ds_add_rtn_u32 v2, v7, v4 offset:{L_CA}
    s_mov_b64 exec, -1
    ds_read2st64_b32 v[24:25], v8 offset0:{L_AACC//256} offset1:{L_AACC//256+2}
    ds_read2st64_b32 v[26:27], v8 offset0:{L_AACC//256+1} offset1:{L_AACC//256+3}
    s_lshl_b32 s49, s5, 9
    s_add_u32 s53, s12, {WS_OA}
    s_add_u32 s54, s53, s49
    s_mul_i32 s55, s5, {OBS}
    s_add_u32 s55, s55, s12
    s_add_u32 s55, s55, {WS_OB}
    v_mov_b32 v44, -1
    v_mov_b32 v45, -1
    v_mov_b32 v46, -1
    v_mov_b32 v47, -1
    s_mov_b32 s62, -1
    s_movk_i32 s63, 0xff
    s_waitcnt lgkmcnt(0)
    v_readfirstlane_b32 s48, v2
    v_add_f32 v2, v24, v26
    v_add_f32 v3, v25, v27
    s_cmp_lg_u32 s48, 3
    s_cbranch_scc1 L_G
    buffer_store_dwordx2 v[2:3], v9, s[8:11], s54 offen
    s_mov_b64 exec, s[62:63]
    buffer_store_dwordx4 v[44:47], v1, s[8:11], s55 offen
    s_mov_b64 exec, -1
    """)
    stamp(1)
    a(f"""
    s_getreg_b32 s56, hwreg(HW_REG_XCC_ID, 0, 4)
    s_mul_i32 s50, s50, 0x9e3779b1
    s_add_u32 s50, s50, 0x7f4a7c15
    s_mov_b32 s51, s50
    {"s_mov_b32 s56, s5" if forcemixed else ""}
    s_add_u32 s56, s56, s50
    s_mov_b32 s57, s56
    s_mov_b32 s6, s56
    s_add_u32 s52, s12, {WS_F}
    s_lshl_b32 s49, s5, 2
    s_add_u32 s49, s49, s52
    s_mov_b32 s58, {SPIN}
    s_waitcnt vmcnt(0)
    s_atomic_swap s6, s[8:9], s49
    """)
    stamp(2)
    a.label("L_A2p")
    a(f"""
    s_sleep {a2sleep}
    s_load_dwordx8 s[64:71], s[8:9], s52 glc
    s_sub_u32 s58, s58, 1
    s_cbranch_scc1 L_A2g
    s_waitcnt lgkmcnt(0)
    """)
    for k in range(8): a(f"s_sub_u32 s48, s{64+k}, s50\ns_cmp_ge_u32 s48, 16\ns_cbranch_scc1 L_A2p")
    for k in range(4): a(f"s_cmp_eq_u64 s[{64+2*k}:{65+2*k}], s[56:57]\ns_cbranch_scc0 L_Amix")
    a.label("L_A2g")
    stamp(3)
    for k in range(4): a(f"buffer_load_dwordx4 v[{24+4*k}:{27+4*k}], v1, s[8:11], s53 offen offset:{1024*k} nt")
    a.label("L_A2s")
    a("s_waitcnt vmcnt(0) lgkmcnt(0)")
    for e in range(4): a(f"v_add_f32 v{24+e}, v{24+e}, v{28+e}\nv_add_f32 v{32+e}, v{32+e}, v{36+e}")
    for e in range(4): a(f"v_add_f32 v{24+e}, v{24+e}, v{32+e}")
    a(f"""
    v_cvt_pk_bf16_f32 v28, v24, v26
    v_cvt_pk_bf16_f32 v25, 0, v25
    v_cvt_pk_bf16_f32 v27, 0, v27
    ds_write_b32 v8, v28 offset:{L_Q}
    v_mov_b32 v29, v25
    v_mov_b32 v30, v27
    v_permlane32_swap_b32 v25, v29
    v_permlane32_swap_b32 v27, v30
    v_mul_f32 v32, 0xbfb8aa3b, v25
    v_mul_f32 v33, 0xbfb8aa3b, v27
    v_exp_f32 v32, v32
    v_exp_f32 v33, v33
    v_add_f32 v32, 1.0, v32
    v_add_f32 v33, 1.0, v33
    v_rcp_f32 v32, v32
    v_rcp_f32 v33, v33
    v_mul_f32 v32, v25, v32
    v_mul_f32 v33, v27, v33
    v_cvt_pk_bf16_f32 v32, 0, v32
    v_cvt_pk_bf16_f32 v33, 0, v33
    v_mul_f32 v32, v32, v29
    v_mul_f32 v33, v33, v30
    v_cvt_pk_bf16_f32 v28, v32, v33
    v_mov_b32 v3, s50
    ds_write_b32 v8, v28 offset:{L_H}
    s_mov_b64 exec, 1
    ds_write_b32 v7, v3 offset:{L_TAG}
    ds_write_b32 v7, v4 offset:{L_QF}
    s_mov_b64 exec, -1
    """)
    stamp(4)
    if warm:
        a("s_branch L_G2")
        a.label("L_G")
        a("s_mov_b64 exec, 0")
        if warmkv: a("s_cmp_eq_u32 s48, 0\ns_cbranch_scc1 PK1_0\ns_cmp_eq_u32 s48, 1\ns_cbranch_scc1 PK2_0")
        a("s_branch PG_0")
        a.label("L_wback")
        a("s_mov_b64 exec, -1")
        a.label("L_G2")
    else:
        if fc: a("s_branch L_G2")
        a.label("L_G")
        if fc:
            a("s_cmp_lg_u32 s48, 0\ns_cbranch_scc1 L_G2")
            import struct
            f2h = lambda x: hex(struct.unpack("<I", struct.pack("<f", x))[0])
            WS_P = 0x200
            thr = fc.get("thr", 4)
            a(f"""
            s_mul_i32 s50, s50, 0x9e3779b1
            s_add_u32 s50, s50, 0x7f4a7c15
            v_mul_u32_u24 v3, {fc.get('pstride', 64)}, v0
            s_mul_i32 s51, s4, {fc.get('pstride', 64)}
            s_add_u32 s51, s51, {WS_P}
            v_mov_b32 v4, s50
            """)
            lds_spin(L_PC, thr, sleep=2)
            a(f"""
            s_memrealtime s[52:53]
            s_cmp_lg_u32 s5, {fc.get('rep', 0)}
            s_waitcnt lgkmcnt(0)
            s_cbranch_scc1 L_fc1
            v_mov_b32 v5, s52
            s_mov_b64 exec, 1
            buffer_store_dwordx2 v[4:5], v7, s[8:11], s51 offen sc1
            s_mov_b64 exec, -1
            """)
            a.label("L_fc1")
            lds_spin(L_PC, 8 + thr, sleep=2)
            a(f"""
            s_movk_i32 s51, {WS_P}
            s_mov_b32 exec_hi, 0
            buffer_load_dwordx2 v[10:11], v3, s[8:11], s51 offen sc1
            s_mov_b64 exec, -1
            v_mov_b32 v12, {f2h(fc.get('miss', 120.0))}
            s_waitcnt vmcnt(0)
            v_subrev_u32 v11, s52, v11
            v_cmp_eq_u32 vcc, s50, v10
            v_cvt_f32_i32 v11, v11
            v_cndmask_b32 v11, v12, v11, vcc
            """)
            for r in (8, 4, 2, 1): a(f"v_add_f32_dpp v11, v11, v11 row_ror:{r} row_mask:0xf bank_mask:0xf")
            a(f"""
            v_mov_b32 v12, v11
            v_permlane16_swap_b32 v12, v11
            v_add_f32 v11, v12, v11
            v_add_f32 v11, {f2h(32.0 * fc.get('bias', 0.0))}, v11
            v_mul_f32 v11, {f2h(fc['gain'] / 32.0)}, v11
            v_max_f32 v11, 0, v11
            v_min_f32 v11, {f2h(float(fc.get('kmax', 11)))}, v11
            v_cvt_u32_f32 v11, v11
            v_add_u32 v11, {fc['cp'][1] + fc['lag']}, v11
            s_mov_b64 exec, 1
            ds_write_b32 v7, v11 offset:{L_HOLD}
            s_mov_b64 exec, -1
            """)
            a.label("L_G2")
    GW, GG, GP, GM, GO = 24, 56, 72, 64, 76
    def mljob():
        LX = a.newlabel('Lml')
        a(f"""
        s_cmp_lg_u32 s3, 3
        s_cbranch_scc1 {LX}
        v_and_b32 v113, 7, v0
        v_lshlrev_b32 v113, 3, v113
        s_mul_i32 s51, s5, {OBS}
        s_add_u32 s51, s51, s12
        s_add_u32 s51, s51, {WS_OB}
        """)
        lds_spin(L_C1, 8, sleep=2)
        a(f"""
        ds_read_b64 v[110:111], v113 offset:{L_POST}
        ds_read_b32 v114, v7 offset:{L_QF}
        s_waitcnt lgkmcnt(0)
        v_mov_b32 v112, v110
        v_readfirstlane_b32 s7, v114
        """)
        for r in (4, 2, 1): a(f"v_max_f32_dpp v112, v112, v112 row_ror:{r} row_mask:0xf bank_mask:0xf")
        a("v_sub_f32 v110, v110, v112\nv_exp_f32 v110, v110\nv_mul_f32 v113, v110, v111")
        for r in (4, 2, 1): a(f"v_add_f32_dpp v113, v113, v113 row_ror:{r} row_mask:0xf bank_mask:0xf")
        a("s_mov_b64 exec, 1")
        mstore("buffer_store_dwordx2 v[112:113], v7, s[8:11], s51 offen offset:512")
        a("s_mov_b64 exec, -1")
        if sset != 3: stamp(14)
        a.label(LX)
    if not gpre: mljob()
    a(f"""
    v_lshrrev_b32 v3, 3, v0
    v_and_b32 v4, 7, v0
    v_lshlrev_b32 v5, 4, v4
    s_movk_i32 s49, {1280 if gpat == 1 else 10240}
    v_mad_u32_u24 v8, v3, s49, v5
    """)
    if inbox:
        a("v_lshrrev_b32 v10, 5, v0\nv_lshl_add_u32 v10, v4, 1, v10\nv_mul_u32_u24 v10, 3072, v10\nv_and_b32 v2, 16, v0\nv_add_u32 v10, v10, v2")
    else:
        a("v_lshrrev_b32 v10, 4, v0\nv_lshl_add_u32 v10, v4, 2, v10\nv_lshlrev_b32 v10, 4, v10")
    if rd2:
        assert not inbox
        a(f"""
        s_mov_b32 s76, -1
        s_mov_b32 s64, s8
        s_mov_b32 s65, s9
        s_mov_b32 s66, {T_END}
        s_mov_b32 s67, 0x20000
        s_mov_b32 s72, s34
        s_mov_b32 s73, s35
        s_mov_b32 s74, 1280
        s_mov_b32 s75, 0x20000
        s_mov_b32 s78, 3
        s_mov_b32 s79, 3
        v_lshrrev_b32 v104, 1, v0
        v_and_b32 v105, 1, v0
        v_mul_u32_u24 v104, {TS}, v104
        v_lshl_add_u32 v104, v105, 4, v104
        v_lshrrev_b32 v2, 5, v0
        v_lshl_add_u32 v105, v105, 1, v2
        v_lshlrev_b32 v105, 1, v105
        """)
    TSL = 32 if inbox else TS
    ZB = 2048 if inbox else 64 * TS
    a(f"""
    s_cmp_ge_u32 s5, 5
    s_cbranch_scc1 L_Gd
    s_mov_b32 s40, s24
    s_mov_b32 s41, s25
    s_mov_b32 s42, {4096*1280}
    s_lshr_b32 s14, s3, 1
    s_lshl_b32 s48, s4, 1
    s_add_u32 s48, s48, s14
    s_lshl_b32 s49, s5, 1
    s_add_u32 s49, s49, s13
    s_mul_i32 s52, s48, {64*1280}
    s_mul_i32 s57, s48, {TSL}
    s_add_u32 s57, s57, {WS_T}
    s_branch L_Gl
    """)
    a.label("L_Gd")
    a(f"""
    s_cmp_ge_u32 s36, 27
    s_cbranch_scc1 {"L_Gnone" if gpre else "L_Gend"}
    s_sub_u32 s49, s5, 5
    s_lshl_b32 s49, s49, 2
    s_add_u32 s49, s49, s3
    s_cmp_ge_u32 s49, 10
    s_cbranch_scc1 {"L_Gnone" if gpre else "L_Gend"}
    s_mov_b32 s40, s32
    s_mov_b32 s41, s33
    s_mov_b32 s42, {1728*1280}
    s_mul_i32 s52, s36, {64*1280}
    s_mul_i32 s57, s36, {TSL}
    s_add_u32 s57, s57, {WS_T+ZB}
    """)
    if rd2:
        a(f"""
        s_cmp_ge_u32 s49, 8
        s_cbranch_scc1 L_Gl
        s_cmp_ge_u32 s4, 20
        s_cbranch_scc1 L_Gl
        s_lshl_b32 s76, s4, 3
        s_add_u32 s76, s76, s49
        s_lshl_b32 s48, s76, 5
        s_add_u32 s68, s48, {WS_T}
        s_add_u32 s69, s48, {WS_T+32*TS}
        s_add_u32 s70, s48, {WS_T+64*TS}
        s_lshl_b32 s71, s76, 3
        buffer_load_ushort v106, v105, s[44:47], s71 offen
        """)
    a.label("L_Gl")
    a(f"""
    s_lshl_b32 s48, s49, 7
    s_add_u32 s52, s52, s48
    s_add_u32 s53, s52, 5120
    s_mul_i32 s48, s49, {16*3072 if inbox else 512}
    s_add_u32 s57, s57, s48
    s_mov_b32 s60, 0x05040100
    s_mov_b32 s61, 0x07060302
    s_mov_b32 s62, 0x00ff00ff
    s_mov_b32 s63, 0x00ff00ff
    s_add_u32 s54, s12, {WS_OB}
    s_lshl_b32 s55, s14, 8
    s_add_u32 s55, s55, s54
    v_lshrrev_b32 v2, 4, v0
    v_and_b32 v5, 15, v0
    v_mul_u32_u24 v11, {OBS}, v2
    v_lshl_add_u32 v9, v5, 4, v11
    v_lshlrev_b32 v6, 4, v3
    s_lshl_b32 s48, s3, 7
    v_add_u32 v14, s48, v6
    v_lshl_add_u32 v15, v5, 2, v2
    v_lshlrev_b32 v15, 1, v15
    v_add_u32 v15, s48, v15
    """)
    for e in range(8): a(f"v_mov_b32 v{ACC+e}, 0")
    def gather_o():
        for k in range(2):
            a(f"buffer_load_dwordx4 v[{GG+4*k}:{GG+4*k+3}], v9, s[8:11], s55 offen offset:{4*OBS*k} {pfl}")
    def gather_ml():
        for k in range(2):
            a(f"buffer_load_dwordx2 v[{GM+2*k}:{GM+2*k+1}], v11, s[8:11], s54 offen offset:{512+4*OBS*k} {pfl}")
    def perms(ks):
        for k in ks:
            for t in range(4):
                lo, hi = GW + 8 * k + t, GW + 8 * k + 4 + t
                a(f"v_perm_b32 v{88+4*k+t}, v{hi}, v{lo}, s61\nv_perm_b32 v{lo}, v{hi}, v{lo}, s60")
    if gpat == 2:
        a("""
        v_mov_b32 v8, v1
        s_mul_i32 s52, s4, 20
        s_lshl_b32 s53, s5, 2
        s_add_u32 s52, s52, s53
        s_add_u32 s52, s52, s3
        s_mul_i32 s53, s36, 10
        s_add_u32 s53, s53, s49
        s_cmp_ge_u32 s5, 5
        s_cselect_b32 s52, s53, s52
        s_lshl_b32 s52, s52, 13
        """)
    if amp == "q":
        lds_spin(L_QF, 1, sleep=1); ampmark("q")
    def wload(i):
        a(f"buffer_load_dwordx4 v[{GW+4*i}:{GW+4*i+3}], v8, s[40:43], s{52+i//4} offen offset:{(i%4)*1280} nt")
    for i in range(gpre):
        if i >= gpd: a(f"s_waitcnt vmcnt({gpd-1})")
        wload(i)
    if gpre: mljob()
    if gstep:
        a(f"s_mul_i32 s15, s3, {gstep}\ns_add_u32 s15, s15, {gwait}\ns_min_u32 s15, s15, 8")
        lds_spin(L_IS, "s15", sleep=2)
    else: lds_spin(L_IS, gwait, sleep=2)
    ampmark("is")
    if flate:
        a("s_cmp_eq_u32 s37, 0\ns_cbranch_scc1 L_nofl")
        for i in range(10):
            if flate > 1 and i >= flate: a(f"s_waitcnt vmcnt({flate-1})")
            a(f"buffer_load_dwordx4 v[{120}:{123}], v115, s[72:75], s76 offen nt\ns_add_u32 s76, s76, s77")
        a.label("L_nofl")
    gather_ml()
    for i in range(gpre, 8):
        if i - gpre >= gdepth: a(f"s_waitcnt vmcnt({gdepth-1})")
        wload(i)
        if i == max(3, gpre):
            a(f"""
            ds_read_b32 v{GO+1}, v7 offset:{L_TAG}
            ds_read_b32 v{GO+3}, v7 offset:{L_TAG}
            ds_read_b128 v[{GP}:{GP+3}], v6 offset:{L_H}
            """)
    stamp(8); stamp(8, 4)
    if 'B' in no:
        a("s_waitcnt vmcnt(0)")
        stamp(9); stamp(9, 4)
        a("s_branch L_Gend")
    if warm: a.pad_start("PG", warm)
    a(f"s_waitcnt vmcnt({min(4, 8-gpre)}) lgkmcnt(0)")
    perms((0, 1))
    a(f"s_mov_b32 s58, {SPIN}\ns_cmp_lt_u32 s5, 5\ns_cbranch_scc1 L_Gmc")
    if rd2: a(f"v_cmp_gt_u32 vcc, 54, v0\nv_lshlrev_b32 v106, 16, v106\nv_cndmask_b32 v107, 0, v{GO+1}, vcc")
    a("s_waitcnt vmcnt(0)\ns_branch L_Gw")
    a.label("L_Gmr")
    if psleep: a(f"s_sleep {psleep}")
    gather_ml()
    a("s_waitcnt vmcnt(0)")
    a.label("L_Gmc")
    a(f"""
    s_sub_u32 s58, s58, 1
    s_cbranch_scc1 L_Gmx
    v_max3_u32 v2, v{GM}, v{GM+1}, v{GM+2}
    v_max_u32 v2, v2, v{GM+3}
    v_cmp_eq_u32 vcc, -1, v2
    s_cbranch_vccnz L_Gmr
    """)
    a.label("L_Gmx")
    stamp(14, 3)
    if sset == 3: a(f"s_sub_u32 s95, {SPIN}, s58\ns_mul_i32 s95, s95, 100\ns_add_u32 s95, s95, s80\ns_bitset1_b32 s98, 15")
    a(f"""
    v_max_f32 v2, v{GM}, v{GM+2}
    v_mov_b32 v3, v2
    v_permlane16_swap_b32 v3, v2
    v_max_f32 v2, v3, v2
    v_mov_b32 v3, v2
    v_permlane32_swap_b32 v3, v2
    v_max_f32 v2, v3, v2
    v_sub_f32 v12, v{GM}, v2
    v_sub_f32 v13, v{GM+2}, v2
    v_exp_f32 v12, v12
    v_exp_f32 v13, v13
    v_mul_f32 v2, v12, v{GM+1}
    v_fmac_f32 v2, v13, v{GM+3}
    v_mov_b32 v3, v2
    v_permlane16_swap_b32 v3, v2
    v_add_f32 v2, v3, v2
    v_mov_b32 v3, v2
    v_permlane32_swap_b32 v3, v2
    v_add_f32 v2, v3, v2
    v_rcp_f32 v2, v2
    v_mul_f32 v12, v12, v2
    v_mul_f32 v13, v13, v2
    """)
    stamp(9)
    lds_spin(L_OPF, 1, sleep=0)
    gather_o()
    a(f"s_mov_b32 s58, {SPIN}\ns_waitcnt vmcnt(2)")
    a.label("L_Gw")
    stamp(5, 3)
    perms((2, 3))
    stamp(7, 3)
    a("s_cmp_ge_u32 s5, 5\ns_cbranch_scc1 L_Gdot\ns_branch L_Gchk")
    a.label("L_Gre")
    if psleep: a(f"s_sleep {psleep}")
    gather_o()
    a.label("L_Gchk")
    a(f"""
    s_sub_u32 s58, s58, 1
    s_waitcnt vmcnt(0)
    s_cbranch_scc1 L_Gc
    v_max3_u32 v2, v{GG}, v{GG+1}, v{GG+2}
    v_max3_u32 v3, v{GG+3}, v{GG+4}, v{GG+5}
    v_max3_u32 v2, v2, v{GG+6}, v{GG+7}
    v_max_u32 v2, v2, v3
    v_cmp_eq_u32 vcc, -1, v2
    s_and_b64 exec, exec, vcc
    s_cbranch_execnz L_Gre
    """)
    a.label("L_Gc")
    a("s_mov_b64 exec, -1")
    stamp(10)
    if sset == 3: a(f"s_sub_u32 s86, {SPIN}, s58\ns_mul_i32 s86, s86, 100\ns_add_u32 s86, s86, s80\ns_bitset1_b32 s98, 6")
    for k in range(4): a(f"v_mul_f32 v{GG+k}, v12, v{GG+k}")
    for k in range(4): a(f"v_fmac_f32 v{GG+k}, v13, v{GG+4+k}")
    a(f"""
    v_permlane32_swap_b32 v{GG}, v{GG+2}
    v_permlane32_swap_b32 v{GG+1}, v{GG+3}
    v_add_f32 v{GG}, v{GG}, v{GG+2}
    v_add_f32 v{GG+1}, v{GG+1}, v{GG+3}
    v_permlane16_swap_b32 v{GG}, v{GG+1}
    v_add_f32 v{GG}, v{GG}, v{GG+1}
    v_cvt_pk_bf16_f32 v{GG}, v{GG}, v{GG}
    ds_write_b16 v15, v{GG} offset:{L_GO}
    ds_read_b128 v[{GP}:{GP+3}], v14 offset:{L_GO}
    s_waitcnt lgkmcnt(0)
    """)
    a.label("L_Gdot")
    for k in range(1 if 'g' in no else 4):
        for t in range(4):
            a(f"v_dot2c_f32_bf16 {A(2*t)}, v{GW+8*k+t}, v{GP+k}\nv_dot2c_f32_bf16 {A(2*t+1)}, v{88+4*k+t}, v{GP+k}")
    for e in range(4): a(f"v_permlane32_swap_b32 {A(e)}, {A(e+4)}")
    for e in range(4): a(f"v_add_f32 {A(e)}, {A(e)}, {A(e+4)}")
    for e in range(2): a(f"v_permlane16_swap_b32 {A(e)}, {A(e+2)}")
    for e in range(2): a(f"v_add_f32 {A(e)}, {A(e)}, {A(e+2)}")
    a(f"""
    v_add_f32_dpp v{GO}, {A(0)}, {A(0)} row_ror:8 row_mask:0xf bank_mask:0xf
    v_add_f32_dpp v{GO+2}, {A(1)}, {A(1)} row_ror:8 row_mask:0xf bank_mask:0xf
    s_mov_b64 exec, s[62:63]
    {"" if 'T' in no else f"buffer_store_dwordx4 v[{GO}:{GO+3}], v10, s[8:11], s57 offen sc1"}
    """)
    stamp(11); ampmark("gs")
    if 'T' in no or 'R' in no: a("s_branch L_Gend")
    if rd2:
        a(f"""
        s_cmp_eq_u32 s76, -1
        s_cbranch_scc1 L_Gend
        s_mov_b64 exec, -1
        s_mov_b32 s58, {SPIN}
        """)
        a.label("L_ry")
        if rsleep: a(f"s_sleep {rsleep}")
        a(f"""
        buffer_load_dwordx4 v[24:27], v104, s[64:67], s68 offen sc1
        buffer_load_dwordx4 v[28:31], v104, s[64:67], s69 offen sc1
        buffer_load_dwordx4 v[32:35], v104, s[64:67], s70 offen sc1
        s_sub_u32 s58, s58, 1
        s_waitcnt vmcnt(0)
        s_cbranch_scc1 L_ryx
        v_xor_b32 v2, v25, v{GO+1}
        v_xor_b32 v3, v33, v107
        v_bitop3_b32 v2, v27, v{GO+1}, v2 bitop3:0xbe
        v_bitop3_b32 v3, v35, v107, v3 bitop3:0xbe
        v_bitop3_b32 v2, v29, v{GO+1}, v2 bitop3:0xbe
        v_bitop3_b32 v3, v31, v{GO+1}, v3 bitop3:0xbe
        v_or_b32 v2, v2, v3
        v_cmp_ne_u32 vcc, 0, v2
        s_and_b64 exec, exec, vcc
        s_cbranch_execnz L_ry
        """)
        a.label("L_ryx")
        a("s_mov_b64 exec, -1")
        stamp(12)
        a(f"""
        v_permlane32_swap_b32 v32, v34
        v_add_f32 v24, v24, v28
        v_add_f32 v26, v26, v30
        v_add_f32 v32, v32, v34
        v_mov_b32 v33, v32
        v_permlane32_swap_b32 v24, v26
        v_add_f32 v24, v24, v26
        v_permlane16_swap_b32 v32, v33
        v_mov_b32 v25, v24
        v_add_f32 v32, v32, v33
        s_nop 0
        v_permlane16_swap_b32 v24, v25
        v_add_f32_dpp v32, v32, v32 row_ror:8 row_mask:0xf bank_mask:0xf
        v_add_f32 v24, v24, v25
        v_add_f32_dpp v32, v32, v32 row_ror:4 row_mask:0xf bank_mask:0xf
        v_add_f32_dpp v24, v24, v24 row_ror:8 row_mask:0xf bank_mask:0xf
        v_add_f32_dpp v32, v32, v32 row_ror:2 row_mask:0xf bank_mask:0xf
        v_add_f32_dpp v24, v24, v24 row_ror:4 row_mask:0xf bank_mask:0xf
        v_cvt_pk_bf16_f32 v32, 0, v32
        v_mul_f32 v2, 0xbfb8aa3b, v32
        v_add_f32_dpp v24, v24, v24 row_ror:2 row_mask:0xf bank_mask:0xf
        v_exp_f32 v2, v2
        v_cvt_pk_bf16_f32 v24, 0, v24
        v_add_f32 v2, 1.0, v2
        v_rcp_f32 v2, v2
        s_mov_b64 exec, s[78:79]
        v_mul_f32 v2, v32, v2
        v_cvt_pk_bf16_f32 v2, 0, v2
        v_mul_f32 v2, v24, v2
        v_cvt_pk_bf16_f32 v2, 0, v2
        v_add_f32 v2, v106, v2
        v_cvt_pk_bf16_f32 v2, v2, v2
        buffer_store_short v2, v105, s[72:75], s71 offen
        s_cmp_lg_u32 s76, 0
        s_cbranch_scc1 L_rnb
        s_mov_b64 exec, 1
        buffer_store_dword v{GO+1}, v7, s[8:11], 0 offen sc1
        """)
    else:
        a(f"""
        s_sub_u32 s48, s5, 5
        s_cmp_ge_u32 s48, 2
        s_cbranch_scc1 L_Gend
        s_cmp_ge_u32 s4, 20
        s_cbranch_scc1 L_Gend
        s_mov_b64 exec, -1
        s_lshl_b32 s6, s4, 3
        s_add_u32 s6, s6, s49
        s_mov_b32 s40, s8
        s_mov_b32 s41, s9
        s_mov_b32 s42, {WS_T+160*3072 if inbox else T_END}
        s_mov_b32 s44, s16
        s_mov_b32 s45, s17
        s_mov_b32 s46, 1280
        v_lshrrev_b32 v3, 1, v0
        v_and_b32 v4, 1, v0
        v_mul_u32_u24 v3, {TSL}, v3
        v_lshl_add_u32 v8, v4, 4, v3
        s_mul_i32 s48, s6, {3072 if inbox else 32}
        s_add_u32 s52, s48, {WS_T}
        s_add_u32 s53, s48, {WS_T+32*TSL}
        s_add_u32 s54, s48, {WS_T+ZB}
        v_lshrrev_b32 v3, 5, v0
        v_lshl_add_u32 v4, v4, 1, v3
        v_lshlrev_b32 v9, 1, v4
        s_lshl_b32 s55, s6, 3
        buffer_load_ushort v10, v9, s[44:47], s55 offen
        v_mov_b32 v32, 0
        v_mov_b32 v34, 0
        s_mov_b32 s44, s34
        s_mov_b32 s45, s35
        s_mov_b32 s58, {SPIN}
        s_mov_b32 s56, 3
        s_mov_b32 s57, 3
        s_mov_b32 exec_hi, 0x3fffff
        """)
        a.label("L_rz")
        if zsleep: a(f"s_sleep {zsleep}")
        a(f"""
        buffer_load_dwordx4 v[32:35], v8, s[40:43], s54 offen sc1
        s_sub_u32 s58, s58, 1
        s_waitcnt vmcnt(0)
        s_cbranch_scc1 L_rzx
        v_xor_b32 v2, v33, v{GO+1}
        v_bitop3_b32 v2, v35, v{GO+1}, v2 bitop3:0xbe
        v_cmp_ne_u32 vcc, 0, v2
        s_and_b64 exec, exec, vcc
        s_cbranch_execnz L_rz
        """)
        a.label("L_rzx")
        a(f"""
        s_mov_b64 exec, -1
        buffer_load_dwordx4 v[24:27], v8, s[40:43], s52 offen sc1
        buffer_load_dwordx4 v[28:31], v8, s[40:43], s53 offen sc1
        v_permlane32_swap_b32 v32, v34
        v_lshlrev_b32 v10, 16, v10
        v_add_f32 v32, v32, v34
        v_mov_b32 v33, v32
        v_permlane16_swap_b32 v32, v33
        v_add_f32 v32, v32, v33
        """)
        for r in (8, 4, 2): a(f"v_add_f32_dpp v32, v32, v32 row_ror:{r} row_mask:0xf bank_mask:0xf")
        a(f"""
        v_cvt_pk_bf16_f32 v32, 0, v32
        v_mul_f32 v2, 0xbfb8aa3b, v32
        v_exp_f32 v2, v2
        v_add_f32 v2, 1.0, v2
        v_rcp_f32 v2, v2
        v_mul_f32 v2, v32, v2
        v_cvt_pk_bf16_f32 v12, 0, v2
        s_mov_b32 s58, {SPIN}
        """)
        def yload(b):
            a(f"buffer_load_dwordx4 v[{b}:{b+3}], v8, s[40:43], s52 offen sc1\nbuffer_load_dwordx4 v[{b+4}:{b+7}], v8, s[40:43], s53 offen sc1")
        def ycheck(b):
            a(f"""
            v_xor_b32 v2, v{b+1}, v{GO+1}
            v_xor_b32 v3, v{b+5}, v{GO+1}
            v_bitop3_b32 v2, v{b+3}, v{GO+1}, v2 bitop3:0xbe
            v_bitop3_b32 v3, v{b+7}, v{GO+1}, v3 bitop3:0xbe
            v_or_b32 v2, v2, v3
            v_cmp_ne_u32 vcc, 0, v2
            """)
        if not dual:
            a("s_branch L_ryc")
            a.label("L_ry")
            if rsleep: a(f"s_sleep {rsleep}")
            yload(24)
            a.label("L_ryc")
            a("s_sub_u32 s58, s58, 1\ns_waitcnt vmcnt(0)\ns_cbranch_scc1 L_ryx")
            ycheck(24)
            a("s_and_b64 exec, exec, vcc\ns_cbranch_execnz L_ry")
            a.label("L_ryx")
            a("s_mov_b64 exec, -1")
            stamp(12)
            a("v_add_f32 v24, v24, v28\nv_add_f32 v26, v26, v30")
        else:
            yload(36)
            a("s_mov_b64 s[64:65], -1\ns_mov_b64 s[66:67], -1")
            a.label("L_ry")
            a("s_sub_u32 s58, s58, 1\ns_waitcnt vmcnt(2)\ns_cbranch_scc1 L_ryA\ns_mov_b64 exec, s[64:65]")
            ycheck(24)
            a("s_and_b64 exec, exec, vcc\ns_cbranch_execz L_ryA\ns_mov_b64 s[64:65], exec")
            yload(24)
            a("s_waitcnt vmcnt(2)\ns_mov_b64 exec, s[66:67]")
            ycheck(36)
            a("s_and_b64 exec, exec, vcc\ns_cbranch_execz L_ryB\ns_mov_b64 s[66:67], exec")
            yload(36)
            a("s_branch L_ry")
            a.label("L_ryB")
            a("s_mov_b64 exec, -1\nv_add_f32 v44, v36, v40\nv_add_f32 v46, v38, v42\ns_branch L_ryx")
            a.label("L_ryA")
            a("s_mov_b64 exec, -1\nv_add_f32 v44, v24, v28\nv_add_f32 v46, v26, v30")
            a.label("L_ryx")
            stamp(12)
        Y = 44 if dual else 24
        a(f"""
        s_nop 0
        v_permlane32_swap_b32 v{Y}, v{Y+2}
        v_add_f32 v{Y}, v{Y}, v{Y+2}
        v_mov_b32 v{Y+1}, v{Y}
        v_permlane16_swap_b32 v{Y}, v{Y+1}
        v_add_f32 v{Y}, v{Y}, v{Y+1}
        """)
        for r in (8, 4, 2): a(f"v_add_f32_dpp v{Y}, v{Y}, v{Y} row_ror:{r} row_mask:0xf bank_mask:0xf")
        a(f"""
        v_cvt_pk_bf16_f32 v{Y}, 0, v{Y}
        v_mul_f32 v2, v{Y}, v12
        v_cvt_pk_bf16_f32 v2, 0, v2
        v_add_f32 v2, v10, v2
        v_cvt_pk_bf16_f32 v2, v2, v2
        s_mov_b64 exec, s[56:57]
        buffer_store_short v2, v9, s[44:47], s55 offen {outsc}
        s_cmp_lg_u32 s6, 0
        s_cbranch_scc1 L_rnb
        s_mov_b64 exec, 1
        buffer_store_dword v{GO+1}, v7, s[8:11], 0 offen sc1
        """)
    if amp:
        ampmark("end")
        a("""
        s_memrealtime s[94:95]
        s_waitcnt lgkmcnt(0)
        s_sub_u32 s92, s92, s90
        s_mul_i32 s92, s92, 4
        s_min_u32 s92, s92, 100000
        s_add_u32 s94, s94, s92
        """)
        a.label("L_amp")
        a("""
        s_memrealtime s[96:97]
        s_waitcnt lgkmcnt(0)
        s_sub_u32 s92, s96, s94
        s_cmp_lt_i32 s92, 0
        s_cbranch_scc1 L_amp
        """)
    a.label("L_rnb")
    if warm: a.pad_end("L_wback")
    if stamps:
        a("s_waitcnt vmcnt(0)")
        stamp(13)
    a.label("L_Gend")
    if stamps:
        a("s_movk_i32 s48, 0xf1f\ns_cmp_ge_u32 s5, 5\ns_cselect_b32 s48, 0x301f, s48\ns_cmp_lg_u32 s3, 0\ns_cselect_b32 s48, 0x401e, s48")
        if sset == 1: a("s_bitcmp1_b32 s98, 1\ns_cselect_b32 s49, 0x1f1e, 0\ns_and_b32 s48, s48, 1\ns_or_b32 s48, s48, s49")
        flush_stamps("s48")
    a.label("L_end")
    a("s_endpgm")
    if gpre:
        a.label("L_Gnone")
        mljob()
        a("s_branch L_Gend")
    a.label("L_Amix")
    a(f"""
    buffer_store_dwordx2 v[2:3], v9, s[8:11], s54 offen sc1
    s_mov_b64 exec, s[62:63]
    buffer_store_dwordx4 v[44:47], v1, s[8:11], s55 offen sc1
    s_mov_b64 exec, -1
    s_mov_b32 s6, s50
    s_mov_b32 s58, {SPIN}
    v_mov_b32 v4, 2
    s_waitcnt vmcnt(0)
    s_atomic_swap s6, s[8:9], s49 offset:32
    """)
    a.label("L_Amp")
    a(f"""
    s_sleep {a2sleep}
    s_load_dwordx8 s[64:71], s[8:9], s52 offset:32 glc
    s_sub_u32 s58, s58, 1
    s_cbranch_scc1 L_Amg
    s_waitcnt lgkmcnt(0)
    """)
    for k in range(4): a(f"s_cmp_eq_u64 s[{64+2*k}:{65+2*k}], s[50:51]\ns_cbranch_scc0 L_Amp")
    a.label("L_Amg")
    for k in range(4): a(f"buffer_load_dwordx4 v[{24+4*k}:{27+4*k}], v1, s[8:11], s53 offen offset:{1024*k} sc1")
    a("s_branch L_A2s")

    a.raw(".p2align 6")
    a.label("L_KV")
    K0, V0 = 24, 88
    a(f"""
    s_setprio 1
    s_mov_b32 s42, 0x100000
    s_mov_b32 s46, 0x100000
    s_lshl_b32 s48, s4, 23
    s_add_u32 s48, s48, {28672*256}
    s_sub_u32 s6, s3, 4
    """)
    if hmul is None:
        kmask, kstep = 0x1ffff, 8192 * blk
        a(f"s_lshl_b32 s50, s5, 17\ns_add_u32 s48, s48, s50\ns_mul_i32 s49, s2, {rotmul}\ns_add_u32 s49, s49, s3\ns_mov_b32 s42, 0x20000\ns_mov_b32 s46, 0x20000")
    else:
        kmask, kstep = 0xfffff, 65536 * blk
        a(f"s_mul_i32 s49, s4, {hmul}\ns_lshl_b32 s50, s5, 3\ns_add_u32 s49, s49, s50\ns_add_u32 s49, s49, s6")
    a(f"""
    s_mul_i32 s52, s49, {1024*blk}
    s_and_b32 s52, s52, {kmask}
    s_mov_b32 s60, 0xcccccccc
    s_mov_b32 s61, 0xcccccccc
    s_mov_b32 s62, 0xaaaaaaaa
    s_mov_b32 s63, 0xaaaaaaaa
    v_and_b32 v3, 15, v0
    v_lshrrev_b32 v4, 4, v0
    v_lshlrev_b32 v5, 5, v3
    v_lshl_or_b32 v6, v4, 3, v5
    v_lshlrev_b32 v3, 4, v3
    s_mul_i32 s51, s5, {OBS}
    s_add_u32 s51, s51, s12
    s_add_u32 s51, s51, {WS_OB}
    """)
    for e in range(8): a(f"v_mov_b32 v{ACC+e}, 0")
    a(f"""
    s_waitcnt lgkmcnt(0)
    s_add_u32 s40, s18, s48
    s_addc_u32 s41, s19, 0
    s_add_u32 s44, s20, s48
    s_addc_u32 s45, s21, 0
    """)
    if tlb:
        a(f"""
        s_cmp_lg_u32 s6, 0
        s_cbranch_scc1 L_notlb
        s_mul_i32 s50, s4, {128*1280}
        s_add_u32 s64, s24, s50
        s_addc_u32 s65, s25, 0
        s_min_u32 s50, s4, 26
        s_mul_i32 s50, s50, {64*1280}
        s_add_u32 s66, s32, s50
        s_addc_u32 s67, s33, 0
        v_mov_b32 v12, s44
        v_mov_b32 v13, s45
        v_writelane_b32 v12, s40, 1
        v_writelane_b32 v13, s41, 1
        v_writelane_b32 v12, s64, 2
        v_writelane_b32 v13, s65, 2
        v_writelane_b32 v12, s66, 3
        v_writelane_b32 v13, s67, 3
        v_writelane_b32 v12, s8, 4
        v_writelane_b32 v13, s9, 4
        v_writelane_b32 v12, s34, 5
        v_writelane_b32 v13, s35, 5
        s_mov_b64 exec, {tlb}
        global_load_dword v14, v[12:13], off nt
        s_mov_b64 exec, -1
        """)
        a.label("L_notlb")
    if not kpre: a("s_barrier")
    if bal is not None:
        a(f"s_and_b32 s48, s2, 1\ns_mul_i32 s48, s48, {bal}\ns_cmp_lt_u32 s6, s48\ns_cselect_b64 vcc, 0, -1")
        depth0 = depth; depth = depth + 1
    if fc:
        assert max(fc["cp"]) < 16 + qpos + 3
        a("v_mov_b32 v15, 1")
    T = lambda i: f"v{K0+4*i}"
    def w_q():
        stamp(8, 2)
        lds_spin(L_QF, 1, sleep=1)
        a("s_mov_b32 s7, s48")
        stamp(9, 2)
        a(f"ds_read_b128 v[8:11], v3 offset:{L_Q}\ns_waitcnt lgkmcnt(0)")
        for i in range(16): a(f"v_dot2_f32_bf16 {T(i)}, {T(i)}, v8, 0")
        for i in range(16): a(f"v_dot2c_f32_bf16 {T(i)}, v{K0+4*i+1}, v9")
    def w_s2():
        for t in range(2, 4):
            for i in range(16): a(f"v_dot2c_f32_bf16 {T(i)}, v{K0+4*i+t}, v{8+t}")
    def w_s3():
        for k in range(8): a(f"v_add_f32_dpp {T(k)}, {T(k)}, {T(k)} row_ror:8 row_mask:0xf bank_mask:0x3")
        for k in range(8): a(f"v_add_f32_dpp {T(k)}, {T(k+8)}, {T(k+8)} row_ror:8 row_mask:0xf bank_mask:0xc")
        for k in range(4): a(f"v_add_f32_dpp {T(k)}, {T(k)}, {T(k)} row_shl:4 row_mask:0xf bank_mask:0x5")
        for k in range(4): a(f"v_add_f32_dpp {T(k)}, {T(k+4)}, {T(k+4)} row_shr:4 row_mask:0xf bank_mask:0xa")
        for k in range(4): a(f"v_add_f32_dpp {T(k)}, {T(k)}, {T(k)} quad_perm:[2,3,0,1] row_mask:0xf bank_mask:0xf")
        for k in range(2): a(f"v_cndmask_b32 {T(k)}, {T(k)}, {T(k+2)}, s[60:61]")
        for k in range(2): a(f"v_add_f32_dpp {T(k)}, {T(k)}, {T(k)} quad_perm:[1,0,3,2] row_mask:0xf bank_mask:0xf")
        a(f"""
        v_cndmask_b32 v2, {T(0)}, {T(1)}, s[62:63]
        v_cvt_pk_bf16_f32 v2, 0, v2
        v_mul_f32 v2, {SCALE}, v2
        v_cvt_pk_bf16_f32 v2, 0, v2
        v_mul_f32 v2, {LOG2E}, v2
        v_mov_b32 v14, v2
        """)
    def w_s4():
        allreduce("v_max_f32", "v14", "v3")
        a(f"""
        v_sub_f32 v2, v2, v14
        v_exp_f32 v2, v2
        s_lshl_b32 s48, s6, 3
        v_mov_b32 v4, s48
        v_mov_b32 v15, v2
        v_cvt_pk_bf16_f32 v12, v2, 0
        v_cvt_pk_bf16_f32 v13, 0, v2
        """)
        allreduce("v_add_f32", "v15", "v3")
        a(f"""
        v_mov_b32 v9, 1
        s_mov_b64 exec, 1
        ds_write_b64 v4, v[14:15] offset:{L_POST}
        ds_add_u32 v7, v9 offset:{L_C1}
        s_mov_b64 exec, -1
        """)
        stamp(6)
    def pv(i):
        for t in range(4):
            a(f"v_dot2c_f32_bf16_dpp v{ACC+2*t}, v12, v{V0+4*i+t} row_newbcast:{i} row_mask:0xf bank_mask:0xf")
            a(f"v_dot2c_f32_bf16_dpp v{ACC+2*t+1}, v13, v{V0+4*i+t} row_newbcast:{i} row_mask:0xf bank_mask:0xf")
    chunks = [w_q, w_s2, w_s3, w_s4]
    assert depth - 1 <= qpos <= 11
    pv_done = 0
    for n in range(32):
        if kpre and n == kpre: a("s_barrier")
        if dsched and n in dsched: depth = dsched[n]
        t, i = divmod(n, 16)
        r = (K0, V0)[t] + 4 * i
        srd = ("s[40:43]", "s[44:47]")[t]
        if warm and warmkv and n == 12: a.pad_start("PK1", warm)
        if warm and warmkv and n == 16 + qpos + 5:
            a.pad_end("L_wback"); a.pad_start("PK2", warm)
        if bal is not None and n >= depth0:
            if n < balfrom: a(f"s_waitcnt vmcnt({depth0-1})")
            else:
                L = a.newlabel("Lb")
                a(f"s_waitcnt vmcnt({depth-1})\ns_cbranch_vccz {L}\ns_waitcnt vmcnt({depth0-1})")
                a.label(L)
        elif fc and n > fc["cp"][1] + 1:
            L = a.newlabel("Lf")
            a(f"s_waitcnt vmcnt({depth-1}) lgkmcnt(0)\nv_readfirstlane_b32 s53, v5\ns_cmp_gt_u32 s53, {n}\ns_cbranch_scc0 {L}\ns_waitcnt vmcnt({fc['dlow']-1})")
            a.label(L)
        elif n >= depth: a(f"s_waitcnt vmcnt({depth-1})")
        a(f"buffer_load_dwordx4 v[{r}:{r+3}], v1, {srd}, s52 offen offset:{(i%blk)*1024} nt")
        if fc and fc["cp"][1] + 1 <= n < 31: a(f"ds_read_b32 v5, v7 offset:{L_HOLD}")
        if fc and n in fc["cp"]: a(f"s_mov_b64 exec, 1\nds_add_u32 v7, v15 offset:{L_PC}\ns_mov_b64 exec, -1")
        if sset == 4 and n in (4, 6, 8, 12, 16, 20, 24, 28): stamp({4:1, 6:2, 8:3, 12:4, 16:8, 20:9, 24:10, 28:11}[n], 4)
        if n < 31 and (i % blk) == blk - 1: a(f"s_add_u32 s52, s52, {kstep}\ns_and_b32 s52, s52, {kmask}")
        if n == ispos:
            assert not chunks
            a(f"s_mov_b64 exec, 1\nds_add_u32 v7, v9 offset:{L_IS}\ns_mov_b64 exec, -1")
        if n == 31:
            stamp(5)
            break
        if n >= 16 + qpos:
            if chunks: chunks.pop(0)()
            else:
                avail = n - depth - 16 + 1
                k = max(pv_done, min(avail, pv_done + 4))
                for q in range(pv_done, k): pv(q)
                pv_done = k
    a("v_and_b32 v3, 7, v0\nv_lshlrev_b32 v3, 3, v3")
    stamp(10, 2)
    lds_spin(L_C1, 8, sleep=1)
    stamp(11, 2)
    a(f"""
    ds_read_b32 v2, v3 offset:{L_POST}
    s_waitcnt lgkmcnt(0)
    """)
    for r in (4, 2, 1): a(f"v_max_f32_dpp v2, v2, v2 row_ror:{r} row_mask:0xf bank_mask:0xf")
    a("v_sub_f32 v15, v14, v2\nv_exp_f32 v15, v15")
    a(f"""
    v_lshlrev_b32 v5, 3, v0
    s_lshl_b32 s49, s6, 9
    v_add_u32 v4, s49, v5
    """)
    stamp(12, 2)
    for q in range(pv_done, 16):
        if q >= 16 - depth: a(f"s_waitcnt vmcnt({15-q})")
        pv(q)
    stamp(15); stamp(15, 2); stamp(15, 4)
    if 'v' not in no:
        for e in range(4): a(f"v_permlane32_swap_b32 {A(e)}, {A(e+4)}")
        for e in range(4): a(f"v_add_f32 {A(e)}, {A(e)}, {A(e+4)}")
        for e in range(2): a(f"v_permlane16_swap_b32 {A(e)}, {A(e+2)}")
        for e in range(2): a(f"v_add_f32 {A(e)}, {A(e)}, {A(e+2)}")
    a(f"""
    v_mul_f32 {A(0)}, {A(0)}, v15
    v_mul_f32 {A(1)}, {A(1)}, v15
    ds_write_b64 v4, v[{ACC}:{ACC+1}] offset:{L_OACC}
    s_mov_b64 exec, 1
    ds_add_rtn_u32 v2, v7, v9 offset:{L_C2}
    s_mov_b64 exec, -1
    """)
    rd = f"""
    ds_read2st64_b64 v[24:27], v5 offset0:{L_OACC//512} offset1:{L_OACC//512+1}
    ds_read2st64_b64 v[28:31], v5 offset0:{L_OACC//512+2} offset1:{L_OACC//512+3}
    ds_read2st64_b64 v[32:35], v5 offset0:{L_OACC//512+4} offset1:{L_OACC//512+5}
    ds_read2st64_b64 v[36:39], v5 offset0:{L_OACC//512+6} offset1:{L_OACC//512+7}
    """
    if spec: a(rd + "s_waitcnt lgkmcnt(4)" if not stamps or True else "")
    else: a("s_waitcnt lgkmcnt(0)")
    a(f"""
    v_readfirstlane_b32 s48, v2
    s_cmp_lg_u32 s48, 7
    s_cbranch_scc1 L_notlast
    """)
    if not spec: a(rd)
    a(f"""
    s_waitcnt lgkmcnt(2)
    v_pk_add_f32 v[24:25], v[24:25], v[26:27]
    v_pk_add_f32 v[28:29], v[28:29], v[30:31]
    v_pk_add_f32 v[24:25], v[24:25], v[28:29]
    s_waitcnt lgkmcnt(0)
    v_pk_add_f32 v[32:33], v[32:33], v[34:35]
    v_pk_add_f32 v[36:37], v[36:37], v[38:39]
    v_pk_add_f32 v[24:25], v[24:25], v[32:33]
    v_pk_add_f32 v[24:25], v[24:25], v[36:37]
    """)
    mstore("buffer_store_dwordx2 v[24:25], v6, s[8:11], s51 offen")
    a(f"ds_write_b32 v7, v9 offset:{L_OPF}")
    if warm and warmkv: a.pad_end("L_wback")
    stamp(7); flush_stamps("0xfffe")
    a("s_endpgm")
    a.label("L_notlast")
    a.label("L_end3")
    flush_stamps("0x4000" if sset == 0 else "0")
    a.label("L_last")
    a("s_endpgm")
    nv = 160 if stamps else 152
    a.raw('.section .rodata,"a"'); a.raw(".p2align 6"); a.raw(f".amdhsa_kernel {KN}")
    a.raw(f"  .amdhsa_next_free_vgpr {nv}"); a.raw("  .amdhsa_next_free_sgpr 100"); a.raw(f"  .amdhsa_accum_offset {(nv+3)//4*4}")
    a.raw("  .amdhsa_group_segment_fixed_size 0"); a.raw("  .amdhsa_kernarg_size 96"); a.raw("  .amdhsa_user_sgpr_count 2")
    a.raw("  .amdhsa_user_sgpr_kernarg_segment_ptr 1"); a.raw("  .amdhsa_system_sgpr_workgroup_id_x 1"); a.raw(".end_amdhsa_kernel")
    open(path, "w").write(a.text())

if __name__ == "__main__":
    F=[0,2,4]
    gen("f0.s", ftab=F)
    gen("f1.s", ftab=F, xpos=2)
    gen("f2.s", ftab=F, xpos=5)
    gen("f3.s", ftab=F, kpre=1)
    gen("f4.s", ftab=F, kpre=2)
    gen("f5.s", ftab=F, kpre=4)
    gen("f6.s", ftab=F, cpf=False)
```

```python
import gen16 as g, sys
P=dict(ftab=[0,2,4], pfl="sc1", blk=4, hmul=4, gdepth=5, xpos=5, qpos=7, dual=True, SPIN=2000000)
doc='''; ---------------------------------------------------------------------------------------------
;  write-through; the cross-group partial sums always travel write-through as {value,tag} pairs.
; ---------------------------------------------------------------------------------------------
'''
g.gen("v5.s", **P)
g.gen("v5lin.s", xmap=0, **P)
g.gen("v5fm.s", forcemixed=True, **P)
s=open("v5.s").read()
i=s.index(".amdgcn_target")
open("recurrent_scan__sliding_block_cached__swiglu_ffn__decode.s","w").write(s[:i]+doc+s[i:])
```

```python
import sys
sys.path.insert(0, "gen")
from asmlib import Asm
KN = "recurrent_scan__sliding_block_cached__swiglu_ffn__decode_kernel"
HDR = open("recurrent_scan__sliding_block_cached__swiglu_ffn__decode.s.ref").read().split("; Override launch")[0]

GS = 3 * 4096 + 256
WS_E, WS_G = 0, 0x1000
WS_OA, WS_OB, WS_F = WS_G, WS_G + 4096, WS_G + 9216
OBS = 640
WS_T = 0x80000
TS = 5120
T_END = WS_T + 91 * TS
L_QF, L_C1, L_C2, L_TAG, L_OPF, L_CA, L_IS, L_PC, L_HOLD, L_POST = 0, 4, 8, 12, 16, 20, 24, 28, 32, 64
L_Q, L_H, L_AACC, L_OACC = 256, 512, 1024, 2048
L_PCN = 40
L_PCD = L_AACC + 512
L_GO = L_AACC
LDS_BYTES = 6144
LOG2E = "0x3fb8aa3b"
SCALE = "0x3db504f3"

def gen(path, stamps=False, rotmul=5, a2sleep=8, sset=0, cpf=True, gwait=8, perwave=False, depth=4, qpos=8, gdepth=4,
        blk=1, xmap=2, SPIN=20000, forcemixed=False, ispos=31, zfirst=True, psleep=0, pfl='sc1', gpre=0, gpd=1, zwait=0, no='', warm=0, warmkv=True, amp=None, gstep=0, spec=True, hmul=None, inbox=False, dual=False, outsc='', apat=0, gpat=0, bal=None, balfrom=4, ftab=None, dsched=None, abar=None, adepth=None, tlb=0, fc=None, rd2=False, rsleep=0, zsleep=0, xpos=0, kpre=0, flate=0, issleep=2, opfsleep=0, kvprio=1, aprio=3, pc=False):
    a = Asm()
    a.raw(HDR.rstrip())
    a.raw(f"; @launch grid=(256,1,1) block=(768,1,1) lds={LDS_BYTES}")
    if perwave: a.raw("; nstamp=3072")
    a.raw('.amdgcn_target "amdgcn-amd-amdhsa--gfx950"')
    a.raw(".text"); a.raw(f".globl {KN}"); a.raw(".p2align 8"); a.raw(f".type {KN},@function"); a.raw(f"{KN}:")
    def stamp(i, ss=0):
        if stamps and (ss == sset or (ss == 0 and (i < 8 or i == 13 or sset == 3))):
            a(f"s_memrealtime s[96:97]\ns_waitcnt lgkmcnt(0)\ns_mov_b32 s{80+i}, s96\ns_bitset1_b32 s98, {i}")
    def flush_stamps(mask):
        if not stamps: return
        a("s_mov_b64 exec, -1\nv_lshlrev_b32 v154, 3, v0\nv_mov_b32 v153, 0")
        if perwave:
            a("s_mul_i32 s59, s2, 12\ns_add_u32 s59, s59, s3\ns_lshl_b32 s59, s59, 7\ns_add_u32 s59, s59, 0x20000000")
            mask = "0xffff"
        else:
            a("s_lshl_b32 s59, s2, 7\ns_add_u32 s59, s59, 0x20000000")
        for i in range(16): a(f"v_writelane_b32 v152, s{80+i}, {i}")
        L = a.newlabel("Lfl")
        a(f"s_and_b32 s98, s98, {mask}\ns_mov_b32 s99, 0\ns_cbranch_scc0 {L}\ns_mov_b64 exec, s[98:99]\nbuffer_store_dwordx2 v[152:153], v154, s[8:11], s59 offen")
        a.label(L)
    def allreduce(op, v, t):
        for r in (8, 4, 2, 1):
            a(f"{op}_dpp {v}, {v}, {v} row_ror:{r} row_mask:0xf bank_mask:0xf")
        a(f"v_mov_b32 {t}, {v}\nv_permlane16_swap_b32 {t}, {v}\n{op} {v}, {t}, {v}")
        a(f"v_mov_b32 {t}, {v}\nv_permlane32_swap_b32 {t}, {v}\n{op} {v}, {t}, {v}")
    def lds_spin(off, val, sleep=2):
        L = a.newlabel("Lsp"); X = a.newlabel("Lspx")
        a(f"s_mov_b32 s58, {SPIN}")
        a.label(L)
        a(f"ds_read_b32 v2, v7 offset:{off}\ns_waitcnt lgkmcnt(0)\nv_readfirstlane_b32 s48, v2\ns_cmp_ge_u32 s48, {val}\ns_cbranch_scc1 {X}")
        a((f"s_sleep {sleep}\n" if sleep else "") + f"s_sub_u32 s58, s58, 1\ns_cbranch_scc0 {L}")
        a.label(X)
    def mstore(text):
        L = a.newlabel("Lms"); X = a.newlabel("Lmx")
        a(f"s_cmp_eq_u32 s7, 1\ns_cbranch_scc0 {L}\n{text}\ns_branch {X}")
        a.label(L)
        a(f"{text} sc1")
        a.label(X)
    ACC = 16
    A = lambda e: f"v{ACC+e}"

    if stamps:
        a("s_mov_b32 s98, 0")
        stamp(0)
    if amp: a("s_memrealtime s[90:91]")
    def ampmark(name):
        if amp == name: a("s_memrealtime s[92:93]\ns_waitcnt lgkmcnt(0)")
    a(f"""
    s_cmp_ge_u32 s2, 256
    s_cbranch_scc1 L_end
    s_load_dwordx16 s[16:31], s[0:1], 0
    s_load_dwordx4 s[32:35], s[0:1], 64
    s_load_dwordx2 s[8:9], s[0:1], 88
    """)
    if cpf:
        a("v_lshlrev_b32 v2, 7, v0\ns_getpc_b64 s[48:49]")
        a.label("L_pc")
        a(f"""
        v_cmp_gt_u32 vcc, L_last-L_pc, v2
        s_and_saveexec_b64 s[50:51], vcc
        s_cbranch_execz L_nocpf
        global_load_dword v151, v2, s[48:49]
        """)
        a.label("L_nocpf")
        a("s_mov_b64 exec, -1")
    a(f"""
    v_lshrrev_b32 v1, 6, v0
    v_and_b32 v0, 63, v0
    v_readfirstlane_b32 s3, v1
    v_lshlrev_b32 v1, 4, v0
    v_mov_b32 v7, 0
    """)
    if xmap == 2:
        a("s_bfe_u32 s5, s2, 0x30003\ns_lshr_b32 s4, s2, 6\ns_lshl_b32 s4, s4, 3\ns_and_b32 s6, s2, 7\ns_add_u32 s4, s4, s6")
    else:
        a("s_lshr_b32 s4, s2, 3\ns_add_u32 s5, s2, s4\ns_and_b32 s5, s5, 7")
    a(f"""
    s_mov_b32 s43, 0x20000
    s_mov_b32 s47, 0x20000
    s_mov_b32 s10, 0x40000000
    s_mov_b32 s11, 0x20000
    s_mul_i32 s12, s4, {GS}
    s_cmp_ge_u32 s3, 4
    s_cbranch_scc1 L_KV
    """)
    W0 = 24
    a(f"""
    s_setprio {aprio}
    v_mov_b32 v4, 0
    v_mov_b32 v5, 0
    v_mov_b32 v6, 0
    s_and_b32 s7, s5, 1
    ds_write_b128 v1, v[4:7]
    ds_write_b128 v1, v[4:7] offset:1024
    s_and_b32 s13, s3, 1
    s_and_b32 s14, s5, 6
    s_add_u32 s14, s14, s13
    s_mul_i32 s14, s14, 80
    v_mul_u32_u24 v2, 20, v0
    v_lshrrev_b32 v3, 3, v0
    v_mul_u32_u24 v4, 20, v3
    v_and_b32 v5, 7, v0
    v_lshlrev_b32 v6, 4, v5
    s_lshl_b32 s48, s14, 1
    s_mov_b32 s46, 1280
    """)
    if ftab is None: a("s_mov_b32 s36, s4")
    else:
        tab = 0
        for x in range(8): tab |= (ftab.index(x) if x in ftab else 7) << (4 * x)
        a(f"s_lshl_b32 s36, s4, 2\ns_lshr_b32 s36, {hex(tab)}, s36\ns_and_b32 s36, s36, 7\ns_add_u32 s36, s36, 24\ns_cmp_lt_u32 s4, 24\ns_cselect_b32 s36, s4, s36")
    a(f"""
    s_lshl_b32 s53, s36, 7
    s_lshl_b32 s54, s7, 7
    s_lshl_b32 s55, s4, 8
    s_add_u32 s54, s54, s55
    s_movk_i32 s52, 8192
    s_cmp_ge_u32 s3, 2
    s_cselect_b32 s52, 3456, s52
    s_cselect_b32 s53, s53, s54
    s_mul_i32 s42, s52, 640
    s_mul_i32 s49, s52, {1 if apat == 1 else 10}
    {'s_lshl_b32 s51, s52, 3' if apat == 1 else 's_mov_b32 s51, s52'}
    s_mul_i32 s54, s14, s52
    s_add_u32 s53, s53, s54
    v_mad_u32_u24 v6, v3, s49, v6
    """)
    if apat == 2:
        a("""
        v_mov_b32 v6, v1
        s_movk_i32 s51, 1024
        s_lshl_b32 s53, s4, 4
        s_lshl_b32 s54, s5, 1
        s_add_u32 s53, s53, s54
        s_add_u32 s53, s53, s13
        s_lshl_b32 s54, s36, 3
        s_and_b32 s55, s5, 6
        s_add_u32 s54, s54, s55
        s_add_u32 s54, s54, s13
        s_cmp_ge_u32 s3, 2
        s_cselect_b32 s53, s54, s53
        s_mul_i32 s53, s53, 10240
        """)
    if apat == 3:
        a("""
        s_cmp_ge_u32 s3, 2
        s_cbranch_scc1 L_ap3
        v_lshrrev_b32 v6, 4, v0
        v_mul_u32_u24 v6, 0x14000, v6
        v_and_b32 v8, 15, v0
        v_lshl_add_u32 v6, v8, 4, v6
        s_lshl_b32 s53, s5, 1
        s_add_u32 s53, s53, s13
        s_mul_i32 s53, s53, 0x50000
        s_lshl_b32 s54, s4, 8
        s_add_u32 s53, s53, s54
        """)
        a.label("L_ap3")
    a(f"""
    s_cmp_ge_u32 s36, 27
    s_cselect_b32 s15, 2, 4
    s_cmp_eq_u32 s7, 0
    s_waitcnt lgkmcnt(0)
    s_cselect_b32 s40, s28, s30
    s_cselect_b32 s41, s29, s31
    s_cmp_ge_u32 s3, 2
    s_cselect_b32 s40, s40, s22
    s_cselect_b32 s41, s41, s23
    s_mov_b32 s44, s16
    s_mov_b32 s45, s17
    """)
    if flate:
        a("""
        s_mov_b32 s72, s40
        s_mov_b32 s73, s41
        s_mov_b32 s74, s42
        s_mov_b32 s75, 0x20000
        s_mov_b32 s76, s53
        s_mov_b32 s77, s51
        v_mov_b32 v115, v6
        s_cmp_lt_u32 s3, s15
        s_cselect_b32 s37, 1, 0
        s_cmp_lt_u32 s3, 2
        s_cselect_b32 s37, 0, s37
        s_mov_b32 s15, 2
        """)
    a(f"""
    s_cmp_ge_u32 s3, s15
    s_cbranch_scc1 L_Anoload
    """)
    for i in range(10):
        if i == xpos:
            a("""
            buffer_load_dwordx4 v[104:107], v2, s[44:47], 0 offen
            buffer_load_dword v108, v2, s[44:47], 0 offen offset:16
            buffer_load_dwordx4 v[110:113], v4, s[44:47], s48 offen
            buffer_load_dword v114, v4, s[44:47], s48 offen offset:16
            """)
        a(f"buffer_load_dwordx4 v[{W0+4*i}:{W0+4*i+3}], v6, s[40:43], s53 offen nt")
        if i < 9: a("s_add_u32 s53, s53, s51")
    if abar is not None: a(f"s_waitcnt vmcnt({abar})")
    a.label("L_Anoload")
    a("s_barrier")
    ampmark("bar")
    stamp(8, 1)
    a(f"""
    s_load_dword s50, s[8:9], {WS_E}
    v_lshl_add_u32 v9, v5, 3, v3
    v_lshlrev_b32 v9, 3, v9
    v_lshlrev_b32 v8, 2, v0
    s_cmp_ge_u32 s3, s15
    s_cbranch_scc1 L_Adone
    s_mov_b32 s56, 0xffff0000
    s_mov_b32 s60, 0x05040100
    s_mov_b32 s61, 0x07060302
    s_lshl_b32 s49, s3, 8
    v_add_u32 v10, s49, v8
    """)
    for e in range(8): a(f"v_mov_b32 v{ACC+e}, 0")
    a(f"s_waitcnt vmcnt({12-xpos})")
    ampmark("x")
    stamp(9, 1)
    for k in range(5):
        a(f"v_lshlrev_b32 v{120+2*k}, 16, v{104+k}\nv_and_b32 v{121+2*k}, s56, v{104+k}")
    a("v_add_f32 v2, v120, v121")
    for k in range(2, 10): a(f"v_add_f32 v2, v2, v{120+k}")
    allreduce("v_add_f32", "v2", "v4")
    a("v_mul_f32 v2, 0x3acccccd, v2")
    for k in range(10): a(f"v_sub_f32 v{120+k}, v{120+k}, v2")
    a("v_mul_f32 v5, v120, v120")
    for k in range(1, 10): a(f"v_fmac_f32 v5, v{120+k}, v{120+k}")
    allreduce("v_add_f32", "v5", "v4")
    a(f"""
    v_mul_f32 v5, 0x3acccccd, v5
    v_cvt_pk_bf16_f32 v2, 0, v2
    v_cvt_pk_bf16_f32 v5, 0, v5
    v_add_f32 v5, 0x3727c5ac, v5
    v_cvt_pk_bf16_f32 v5, 0, v5
    v_sqrt_f32 v5, v5
    v_cvt_pk_bf16_f32 v5, 0, v5
    v_rcp_f32 v5, v5
    s_waitcnt vmcnt({10-xpos})
    """)
    for k in range(5):
        x = 110 + k
        a(f"""
        v_lshlrev_b32 v120, 16, v{x}
        v_and_b32 v121, s56, v{x}
        v_sub_f32 v120, v120, v2
        v_sub_f32 v121, v121, v2
        v_cvt_pk_bf16_f32 v120, 0, v120
        v_cvt_pk_bf16_f32 v121, 0, v121
        v_mul_f32 v120, v120, v5
        v_mul_f32 v121, v121, v5
        v_cvt_pk_bf16_f32 v{130+k}, v120, v121
        """)
    stamp(10, 1)
    for k in range(5):
        a(f"s_waitcnt vmcnt({8-2*k})")
        if k == 4: stamp(11, 1); stamp(11, 4)
        if k == 2: stamp(10, 4)
        for t in range(4):
            lo, hi = W0 + 8 * k + t, W0 + 8 * k + 4 + t
            a(f"v_perm_b32 v{140+t}, v{hi}, v{lo}, s61\nv_perm_b32 v{lo}, v{hi}, v{lo}, s60")
        for t in range(4):
            lo = W0 + 8 * k + t
            a(f"v_dot2c_f32_bf16 {A(2*t)}, v{lo}, v{130+k}\nv_dot2c_f32_bf16 {A(2*t+1)}, v{140+t}, v{130+k}")
    for e in range(4): a(f"v_permlane32_swap_b32 {A(e)}, {A(e+4)}")
    for e in range(4): a(f"v_add_f32 {A(e)}, {A(e)}, {A(e+4)}")
    for e in range(2): a(f"v_permlane16_swap_b32 {A(e)}, {A(e+2)}")
    for e in range(2): a(f"v_add_f32 {A(e)}, {A(e)}, {A(e+2)}")
    a(f"""
    v_add_f32_dpp {A(0)}, {A(0)}, {A(0)} row_ror:8 row_mask:0xf bank_mask:0x3
    v_add_f32_dpp {A(0)}, {A(1)}, {A(1)} row_ror:8 row_mask:0xf bank_mask:0xc
    ds_write_b32 v10, {A(0)} offset:{L_AACC}
    """)
    a.label("L_Adone")
    ampmark("adone")
    a(f"""
    v_mov_b32 v4, 1
    s_mov_b64 exec, 1
    ds_add_rtn_u32 v2, v7, v4 offset:{L_CA}
    s_mov_b64 exec, -1
    ds_read2st64_b32 v[24:25], v8 offset0:{L_AACC//256} offset1:{L_AACC//256+2}
    ds_read2st64_b32 v[26:27], v8 offset0:{L_AACC//256+1} offset1:{L_AACC//256+3}
    s_lshl_b32 s49, s5, 9
    s_add_u32 s53, s12, {WS_OA}
    s_add_u32 s54, s53, s49
    s_mul_i32 s55, s5, {OBS}
    s_add_u32 s55, s55, s12
    s_add_u32 s55, s55, {WS_OB}
    v_mov_b32 v44, -1
    v_mov_b32 v45, -1
    v_mov_b32 v46, -1
    v_mov_b32 v47, -1
    s_mov_b32 s62, -1
    s_movk_i32 s63, 0xff
    s_waitcnt lgkmcnt(0)
    v_readfirstlane_b32 s48, v2
    v_add_f32 v2, v24, v26
    v_add_f32 v3, v25, v27
    s_cmp_lg_u32 s48, 3
    s_cbranch_scc1 L_G
    buffer_store_dwordx2 v[2:3], v9, s[8:11], s54 offen
    s_mov_b64 exec, s[62:63]
    buffer_store_dwordx4 v[44:47], v1, s[8:11], s55 offen
    s_mov_b64 exec, -1
    """)
    stamp(1)
    a(f"""
    s_getreg_b32 s56, hwreg(HW_REG_XCC_ID, 0, 4)
    s_mul_i32 s50, s50, 0x9e3779b1
    s_add_u32 s50, s50, 0x7f4a7c15
    s_mov_b32 s51, s50
    {"s_mov_b32 s56, s5" if forcemixed else ""}
    s_add_u32 s56, s56, s50
    s_mov_b32 s57, s56
    s_mov_b32 s6, s56
    s_add_u32 s52, s12, {WS_F}
    s_lshl_b32 s49, s5, 2
    s_add_u32 s49, s49, s52
    s_mov_b32 s58, {SPIN}
    s_waitcnt vmcnt(0)
    s_atomic_swap s6, s[8:9], s49
    """)
    stamp(2)
    a.label("L_A2p")
    a(f"""
    s_sleep {a2sleep}
    s_load_dwordx8 s[64:71], s[8:9], s52 glc
    s_sub_u32 s58, s58, 1
    s_cbranch_scc1 L_A2g
    s_waitcnt lgkmcnt(0)
    """)
    for k in range(8): a(f"s_sub_u32 s48, s{64+k}, s50\ns_cmp_ge_u32 s48, 16\ns_cbranch_scc1 L_A2p")
    for k in range(4): a(f"s_cmp_eq_u64 s[{64+2*k}:{65+2*k}], s[56:57]\ns_cbranch_scc0 L_Amix")
    a.label("L_A2g")
    stamp(3)
    for k in range(4): a(f"buffer_load_dwordx4 v[{24+4*k}:{27+4*k}], v1, s[8:11], s53 offen offset:{1024*k} nt")
    a.label("L_A2s")
    a("s_waitcnt vmcnt(0) lgkmcnt(0)")
    for e in range(4): a(f"v_add_f32 v{24+e}, v{24+e}, v{28+e}\nv_add_f32 v{32+e}, v{32+e}, v{36+e}")
    for e in range(4): a(f"v_add_f32 v{24+e}, v{24+e}, v{32+e}")
    a(f"""
    v_cvt_pk_bf16_f32 v28, v24, v26
    v_cvt_pk_bf16_f32 v25, 0, v25
    v_cvt_pk_bf16_f32 v27, 0, v27
    ds_write_b32 v8, v28 offset:{L_Q}
    v_mov_b32 v29, v25
    v_mov_b32 v30, v27
    v_permlane32_swap_b32 v25, v29
    v_permlane32_swap_b32 v27, v30
    v_mul_f32 v32, 0xbfb8aa3b, v25
    v_mul_f32 v33, 0xbfb8aa3b, v27
    v_exp_f32 v32, v32
    v_exp_f32 v33, v33
    v_add_f32 v32, 1.0, v32
    v_add_f32 v33, 1.0, v33
    v_rcp_f32 v32, v32
    v_rcp_f32 v33, v33
    v_mul_f32 v32, v25, v32
    v_mul_f32 v33, v27, v33
    v_cvt_pk_bf16_f32 v32, 0, v32
    v_cvt_pk_bf16_f32 v33, 0, v33
    v_mul_f32 v32, v32, v29
    v_mul_f32 v33, v33, v30
    v_cvt_pk_bf16_f32 v28, v32, v33
    v_mov_b32 v3, s50
    ds_write_b32 v8, v28 offset:{L_H}
    s_mov_b64 exec, 1
    ds_write_b32 v7, v3 offset:{L_TAG}
    ds_write_b32 v7, v4 offset:{L_QF}
    s_mov_b64 exec, -1
    """)
    stamp(4)
    if warm:
        a("s_branch L_G2")
        a.label("L_G")
        a("s_mov_b64 exec, 0")
        if warmkv: a("s_cmp_eq_u32 s48, 0\ns_cbranch_scc1 PK1_0\ns_cmp_eq_u32 s48, 1\ns_cbranch_scc1 PK2_0")
        a("s_branch PG_0")
        a.label("L_wback")
        a("s_mov_b64 exec, -1")
        a.label("L_G2")
    else:
        if fc: a("s_branch L_G2")
        a.label("L_G")
        if fc:
            a("s_cmp_lg_u32 s48, 0\ns_cbranch_scc1 L_G2")
            import struct
            f2h = lambda x: hex(struct.unpack("<I", struct.pack("<f", x))[0])
            WS_P = 0x200
            thr = fc.get("thr", 4)
            a(f"""
            s_mul_i32 s50, s50, 0x9e3779b1
            s_add_u32 s50, s50, 0x7f4a7c15
            v_mul_u32_u24 v3, {fc.get('pstride', 64)}, v0
            s_mul_i32 s51, s4, {fc.get('pstride', 64)}
            s_add_u32 s51, s51, {WS_P}
            v_mov_b32 v4, s50
            """)
            lds_spin(L_PC, thr, sleep=2)
            a(f"""
            s_memrealtime s[52:53]
            s_cmp_lg_u32 s5, {fc.get('rep', 0)}
            s_waitcnt lgkmcnt(0)
            s_cbranch_scc1 L_fc1
            v_mov_b32 v5, s52
            s_mov_b64 exec, 1
            buffer_store_dwordx2 v[4:5], v7, s[8:11], s51 offen sc1
            s_mov_b64 exec, -1
            """)
            a.label("L_fc1")
            lds_spin(L_PC, 8 + thr, sleep=2)
            a(f"""
            s_movk_i32 s51, {WS_P}
            s_mov_b32 exec_hi, 0
            buffer_load_dwordx2 v[10:11], v3, s[8:11], s51 offen sc1
            s_mov_b64 exec, -1
            v_mov_b32 v12, {f2h(fc.get('miss', 120.0))}
            s_waitcnt vmcnt(0)
            v_subrev_u32 v11, s52, v11
            v_cmp_eq_u32 vcc, s50, v10
            v_cvt_f32_i32 v11, v11
            v_cndmask_b32 v11, v12, v11, vcc
            """)
            for r in (8, 4, 2, 1): a(f"v_add_f32_dpp v11, v11, v11 row_ror:{r} row_mask:0xf bank_mask:0xf")
            a(f"""
            v_mov_b32 v12, v11
            v_permlane16_swap_b32 v12, v11
            v_add_f32 v11, v12, v11
            v_add_f32 v11, {f2h(32.0 * fc.get('bias', 0.0))}, v11
            v_mul_f32 v11, {f2h(fc['gain'] / 32.0)}, v11
            v_max_f32 v11, 0, v11
            v_min_f32 v11, {f2h(float(fc.get('kmax', 11)))}, v11
            v_cvt_u32_f32 v11, v11
            v_add_u32 v11, {fc['cp'][1] + fc['lag']}, v11
            s_mov_b64 exec, 1
            ds_write_b32 v7, v11 offset:{L_HOLD}
            s_mov_b64 exec, -1
            """)
            a.label("L_G2")
    GW, GG, GP, GM, GO = 24, 56, 72, 64, 76
    def mljob():
        LX = a.newlabel('Lml')
        a(f"""
        s_cmp_lg_u32 s3, 3
        s_cbranch_scc1 {LX}
        v_and_b32 v113, 7, v0
        v_lshlrev_b32 v113, 3, v113
        s_mul_i32 s51, s5, {OBS}
        s_add_u32 s51, s51, s12
        s_add_u32 s51, s51, {WS_OB}
        """)
        lds_spin(L_C1, 8, sleep=2)
        a(f"""
        ds_read_b64 v[110:111], v113 offset:{L_POST}
        ds_read_b32 v114, v7 offset:{L_QF}
        s_waitcnt lgkmcnt(0)
        v_mov_b32 v112, v110
        v_readfirstlane_b32 s7, v114
        """)
        for r in (4, 2, 1): a(f"v_max_f32_dpp v112, v112, v112 row_ror:{r} row_mask:0xf bank_mask:0xf")
        a("v_sub_f32 v110, v110, v112\nv_exp_f32 v110, v110\nv_mul_f32 v113, v110, v111")
        for r in (4, 2, 1): a(f"v_add_f32_dpp v113, v113, v113 row_ror:{r} row_mask:0xf bank_mask:0xf")
        a("s_mov_b64 exec, 1")
        mstore("buffer_store_dwordx2 v[112:113], v7, s[8:11], s51 offen offset:512")
        a("s_mov_b64 exec, -1")
        if sset != 3: stamp(14)
        a.label(LX)
    if not gpre: mljob()
    a(f"""
    v_lshrrev_b32 v3, 3, v0
    v_and_b32 v4, 7, v0
    v_lshlrev_b32 v5, 4, v4
    s_movk_i32 s49, {1280 if gpat == 1 else 10240}
    v_mad_u32_u24 v8, v3, s49, v5
    """)
    if inbox:
        a("v_lshrrev_b32 v10, 5, v0\nv_lshl_add_u32 v10, v4, 1, v10\nv_mul_u32_u24 v10, 3072, v10\nv_and_b32 v2, 16, v0\nv_add_u32 v10, v10, v2")
    else:
        a("v_lshrrev_b32 v10, 4, v0\nv_lshl_add_u32 v10, v4, 2, v10\nv_lshlrev_b32 v10, 4, v10")
    if rd2:
        assert not inbox
        a(f"""
        s_mov_b32 s76, -1
        s_mov_b32 s64, s8
        s_mov_b32 s65, s9
        s_mov_b32 s66, {T_END}
        s_mov_b32 s67, 0x20000
        s_mov_b32 s72, s34
        s_mov_b32 s73, s35
        s_mov_b32 s74, 1280
        s_mov_b32 s75, 0x20000
        s_mov_b32 s78, 3
        s_mov_b32 s79, 3
        v_lshrrev_b32 v104, 1, v0
        v_and_b32 v105, 1, v0
        v_mul_u32_u24 v104, {TS}, v104
        v_lshl_add_u32 v104, v105, 4, v104
        v_lshrrev_b32 v2, 5, v0
        v_lshl_add_u32 v105, v105, 1, v2
        v_lshlrev_b32 v105, 1, v105
        """)
    TSL = 32 if inbox else TS
    ZB = 2048 if inbox else 64 * TS
    a(f"""
    s_cmp_ge_u32 s5, 5
    s_cbranch_scc1 L_Gd
    s_mov_b32 s40, s24
    s_mov_b32 s41, s25
    s_mov_b32 s42, {4096*1280}
    s_lshr_b32 s14, s3, 1
    s_lshl_b32 s48, s4, 1
    s_add_u32 s48, s48, s14
    s_lshl_b32 s49, s5, 1
    s_add_u32 s49, s49, s13
    s_mul_i32 s52, s48, {64*1280}
    s_mul_i32 s57, {'s4' if pc else 's48'}, {TSL}
    s_add_u32 s57, s57, {WS_T}
    s_branch L_Gl
    """)
    a.label("L_Gd")
    a(f"""
    s_cmp_ge_u32 s36, 27
    s_cbranch_scc1 {"L_Gnone" if gpre else "L_Gend"}
    s_sub_u32 s49, s5, 5
    s_lshl_b32 s49, s49, 2
    s_add_u32 s49, s49, s3
    s_cmp_ge_u32 s49, 10
    s_cbranch_scc1 {"L_Gnone" if gpre else "L_Gend"}
    s_mov_b32 s40, s32
    s_mov_b32 s41, s33
    s_mov_b32 s42, {1728*1280}
    s_mul_i32 s52, s36, {64*1280}
    s_mul_i32 s57, s36, {TSL}
    s_add_u32 s57, s57, {WS_T+ZB}
    """)
    if rd2:
        a(f"""
        s_cmp_ge_u32 s49, 8
        s_cbranch_scc1 L_Gl
        s_cmp_ge_u32 s4, 20
        s_cbranch_scc1 L_Gl
        s_lshl_b32 s76, s4, 3
        s_add_u32 s76, s76, s49
        s_lshl_b32 s48, s76, 5
        s_add_u32 s68, s48, {WS_T}
        s_add_u32 s69, s48, {WS_T+32*TS}
        s_add_u32 s70, s48, {WS_T+64*TS}
        s_lshl_b32 s71, s76, 3
        buffer_load_ushort v106, v105, s[44:47], s71 offen
        """)
    a.label("L_Gl")
    a(f"""
    s_lshl_b32 s48, s49, 7
    s_add_u32 s52, s52, s48
    s_add_u32 s53, s52, 5120
    s_mul_i32 s48, s49, {16*3072 if inbox else 512}
    s_add_u32 s57, s57, s48
    s_mov_b32 s60, 0x05040100
    s_mov_b32 s61, 0x07060302
    s_mov_b32 s62, 0x00ff00ff
    s_mov_b32 s63, 0x00ff00ff
    s_add_u32 s54, s12, {WS_OB}
    s_lshl_b32 s55, s14, 8
    s_add_u32 s55, s55, s54
    v_lshrrev_b32 v2, 4, v0
    v_and_b32 v5, 15, v0
    v_mul_u32_u24 v11, {OBS}, v2
    v_lshl_add_u32 v9, v5, 4, v11
    v_lshlrev_b32 v6, 4, v3
    s_lshl_b32 s48, s3, 7
    v_add_u32 v14, s48, v6
    v_lshl_add_u32 v15, v5, 2, v2
    v_lshlrev_b32 v15, 1, v15
    v_add_u32 v15, s48, v15
    """)
    for e in range(8): a(f"v_mov_b32 v{ACC+e}, 0")
    def gather_o():
        for k in range(2):
            a(f"buffer_load_dwordx4 v[{GG+4*k}:{GG+4*k+3}], v9, s[8:11], s55 offen offset:{4*OBS*k} {pfl}")
    def gather_ml():
        for k in range(2):
            a(f"buffer_load_dwordx2 v[{GM+2*k}:{GM+2*k+1}], v11, s[8:11], s54 offen offset:{512+4*OBS*k} {pfl}")
    def perms(ks):
        for k in ks:
            for t in range(4):
                lo, hi = GW + 8 * k + t, GW + 8 * k + 4 + t
                a(f"v_perm_b32 v{88+4*k+t}, v{hi}, v{lo}, s61\nv_perm_b32 v{lo}, v{hi}, v{lo}, s60")
    if gpat == 2:
        a("""
        v_mov_b32 v8, v1
        s_mul_i32 s52, s4, 20
        s_lshl_b32 s53, s5, 2
        s_add_u32 s52, s52, s53
        s_add_u32 s52, s52, s3
        s_mul_i32 s53, s36, 10
        s_add_u32 s53, s53, s49
        s_cmp_ge_u32 s5, 5
        s_cselect_b32 s52, s53, s52
        s_lshl_b32 s52, s52, 13
        """)
    if amp == "q":
        lds_spin(L_QF, 1, sleep=1); ampmark("q")
    if pc:
        a(f"""
        v_lshlrev_b32 v116, 3, v0
        s_lshl_b32 s48, s3, 9
        s_add_u32 s48, s48, {L_OACC}
        s_xor_b32 s15, s48, 1024
        v_add_u32 v117, s15, v116
        v_add_u32 v116, s48, v116
        s_lshl_b32 s48, s13, 2
        v_mov_b32 v118, s48
        v_mov_b32 v119, 1
        """)
    def wload(i):
        a(f"buffer_load_dwordx4 v[{GW+4*i}:{GW+4*i+3}], v8, s[40:43], s{52+i//4} offen offset:{(i%4)*1280} nt")
    for i in range(gpre):
        if i >= gpd: a(f"s_waitcnt vmcnt({gpd-1})")
        wload(i)
    if gpre: mljob()
    if gstep:
        a(f"s_mul_i32 s15, s3, {gstep}\ns_add_u32 s15, s15, {gwait}\ns_min_u32 s15, s15, 8")
        lds_spin(L_IS, "s15", sleep=2)
    else: lds_spin(L_IS, gwait, sleep=issleep)
    ampmark("is")
    if flate:
        a("s_cmp_eq_u32 s37, 0\ns_cbranch_scc1 L_nofl")
        for i in range(10):
            if flate > 1 and i >= flate: a(f"s_waitcnt vmcnt({flate-1})")
            a(f"buffer_load_dwordx4 v[{120}:{123}], v115, s[72:75], s76 offen nt\ns_add_u32 s76, s76, s77")
        a.label("L_nofl")
    gather_ml()
    for i in range(gpre, 8):
        if i - gpre >= gdepth: a(f"s_waitcnt vmcnt({gdepth-1})")
        wload(i)
        if i == max(3, gpre):
            a(f"""
            ds_read_b32 v{GO+1}, v7 offset:{L_TAG}
            ds_read_b32 v{GO+3}, v7 offset:{L_TAG}
            ds_read_b128 v[{GP}:{GP+3}], v6 offset:{L_H}
            """)
    stamp(8); stamp(8, 4)
    if 'B' in no:
        a("s_waitcnt vmcnt(0)")
        stamp(9); stamp(9, 4)
        a("s_branch L_Gend")
    if warm: a.pad_start("PG", warm)
    a(f"s_waitcnt vmcnt({min(4, 8-gpre)}) lgkmcnt(0)")
    perms((0, 1))
    a(f"s_mov_b32 s58, {SPIN}\ns_cmp_lt_u32 s5, 5\ns_cbranch_scc1 L_Gmc")
    if rd2: a(f"v_cmp_gt_u32 vcc, 54, v0\nv_lshlrev_b32 v106, 16, v106\nv_cndmask_b32 v107, 0, v{GO+1}, vcc")
    a("s_waitcnt vmcnt(0)\ns_branch L_Gw")
    a.label("L_Gmr")
    if psleep: a(f"s_sleep {psleep}")
    gather_ml()
    a("s_waitcnt vmcnt(0)")
    a.label("L_Gmc")
    a(f"""
    s_sub_u32 s58, s58, 1
    s_cbranch_scc1 L_Gmx
    v_max3_u32 v2, v{GM}, v{GM+1}, v{GM+2}
    v_max_u32 v2, v2, v{GM+3}
    v_cmp_eq_u32 vcc, -1, v2
    s_cbranch_vccnz L_Gmr
    """)
    a.label("L_Gmx")
    stamp(14, 3)
    if sset == 3: a(f"s_sub_u32 s95, {SPIN}, s58\ns_mul_i32 s95, s95, 100\ns_add_u32 s95, s95, s80\ns_bitset1_b32 s98, 15")
    a(f"""
    v_max_f32 v2, v{GM}, v{GM+2}
    v_mov_b32 v3, v2
    v_permlane16_swap_b32 v3, v2
    v_max_f32 v2, v3, v2
    v_mov_b32 v3, v2
    v_permlane32_swap_b32 v3, v2
    v_max_f32 v2, v3, v2
    v_sub_f32 v12, v{GM}, v2
    v_sub_f32 v13, v{GM+2}, v2
    v_exp_f32 v12, v12
    v_exp_f32 v13, v13
    v_mul_f32 v2, v12, v{GM+1}
    v_fmac_f32 v2, v13, v{GM+3}
    v_mov_b32 v3, v2
    v_permlane16_swap_b32 v3, v2
    v_add_f32 v2, v3, v2
    v_mov_b32 v3, v2
    v_permlane32_swap_b32 v3, v2
    v_add_f32 v2, v3, v2
    v_rcp_f32 v2, v2
    v_mul_f32 v12, v12, v2
    v_mul_f32 v13, v13, v2
    """)
    stamp(9)
    lds_spin(L_OPF, 1, sleep=opfsleep)
    gather_o()
    a(f"s_mov_b32 s58, {SPIN}\ns_waitcnt vmcnt(2)")
    a.label("L_Gw")
    stamp(5, 3)
    perms((2, 3))
    stamp(7, 3)
    a("s_cmp_ge_u32 s5, 5\ns_cbranch_scc1 L_Gdot\ns_branch L_Gchk")
    a.label("L_Gre")
    if psleep: a(f"s_sleep {psleep}")
    gather_o()
    a.label("L_Gchk")
    a(f"""
    s_sub_u32 s58, s58, 1
    s_waitcnt vmcnt(0)
    s_cbranch_scc1 L_Gc
    v_max3_u32 v2, v{GG}, v{GG+1}, v{GG+2}
    v_max3_u32 v3, v{GG+3}, v{GG+4}, v{GG+5}
    v_max3_u32 v2, v2, v{GG+6}, v{GG+7}
    v_max_u32 v2, v2, v3
    v_cmp_eq_u32 vcc, -1, v2
    s_and_b64 exec, exec, vcc
    s_cbranch_execnz L_Gre
    """)
    a.label("L_Gc")
    a("s_mov_b64 exec, -1")
    stamp(10)
    if sset == 3: a(f"s_sub_u32 s86, {SPIN}, s58\ns_mul_i32 s86, s86, 100\ns_add_u32 s86, s86, s80\ns_bitset1_b32 s98, 6")
    for k in range(4): a(f"v_mul_f32 v{GG+k}, v12, v{GG+k}")
    for k in range(4): a(f"v_fmac_f32 v{GG+k}, v13, v{GG+4+k}")
    a(f"""
    v_permlane32_swap_b32 v{GG}, v{GG+2}
    v_permlane32_swap_b32 v{GG+1}, v{GG+3}
    v_add_f32 v{GG}, v{GG}, v{GG+2}
    v_add_f32 v{GG+1}, v{GG+1}, v{GG+3}
    v_permlane16_swap_b32 v{GG}, v{GG+1}
    v_add_f32 v{GG}, v{GG}, v{GG+1}
    v_cvt_pk_bf16_f32 v{GG}, v{GG}, v{GG}
    ds_write_b16 v15, v{GG} offset:{L_GO}
    ds_read_b128 v[{GP}:{GP+3}], v14 offset:{L_GO}
    s_waitcnt lgkmcnt(0)
    """)
    a.label("L_Gdot")
    for k in range(1 if 'g' in no else 4):
        for t in range(4):
            a(f"v_dot2c_f32_bf16 {A(2*t)}, v{GW+8*k+t}, v{GP+k}\nv_dot2c_f32_bf16 {A(2*t+1)}, v{88+4*k+t}, v{GP+k}")
    for e in range(4): a(f"v_permlane32_swap_b32 {A(e)}, {A(e+4)}")
    for e in range(4): a(f"v_add_f32 {A(e)}, {A(e)}, {A(e+4)}")
    for e in range(2): a(f"v_permlane16_swap_b32 {A(e)}, {A(e+2)}")
    for e in range(2): a(f"v_add_f32 {A(e)}, {A(e)}, {A(e+2)}")
    a(f"""
    v_add_f32_dpp v{GO}, {A(0)}, {A(0)} row_ror:8 row_mask:0xf bank_mask:0xf
    v_add_f32_dpp v{GO+2}, {A(1)}, {A(1)} row_ror:8 row_mask:0xf bank_mask:0xf
    """)
    if pc:
        a(f"""
        s_cmp_ge_u32 s5, 5
        s_cbranch_scc1 L_Gst
        ds_write2_b32 v116, v{GO}, v{GO+2} offset0:0 offset1:1
        s_mov_b64 exec, 1
        ds_add_rtn_u32 v2, v118, v119 offset:{L_PCN}
        s_mov_b64 exec, -1
        ds_read_b64 v[4:5], v117
        s_waitcnt lgkmcnt(0)
        v_readfirstlane_b32 s48, v2
        v_add_f32 v{GO}, v{GO}, v4
        v_add_f32 v{GO+2}, v{GO+2}, v5
        s_cmp_eq_u32 s48, 0
        s_cbranch_scc1 L_Gend
        """)
        a.label("L_Gst")
    a(f"""
    s_mov_b64 exec, s[62:63]
    {"" if 'T' in no else f"buffer_store_dwordx4 v[{GO}:{GO+3}], v10, s[8:11], s57 offen sc1"}
    """)
    stamp(11); ampmark("gs")
    if 'T' in no or 'R' in no: a("s_branch L_Gend")
    if rd2:
        a(f"""
        s_cmp_eq_u32 s76, -1
        s_cbranch_scc1 L_Gend
        s_mov_b64 exec, -1
        s_mov_b32 s58, {SPIN}
        """)
        a.label("L_ry")
        if rsleep: a(f"s_sleep {rsleep}")
        a(f"""
        buffer_load_dwordx4 v[24:27], v104, s[64:67], s68 offen sc1
        {"" if pc else "buffer_load_dwordx4 v[28:31], v104, s[64:67], s69 offen sc1"}
        buffer_load_dwordx4 v[32:35], v104, s[64:67], s70 offen sc1
        s_sub_u32 s58, s58, 1
        s_waitcnt vmcnt(0)
        s_cbranch_scc1 L_ryx
        v_xor_b32 v2, v25, v{GO+1}
        v_xor_b32 v3, v33, v107
        v_bitop3_b32 v2, v27, v{GO+1}, v2 bitop3:0xbe
        v_bitop3_b32 v3, v35, v107, v3 bitop3:0xbe
        {"" if pc else f"v_bitop3_b32 v2, v29, v{GO+1}, v2 bitop3:0xbe"}
        {"" if pc else f"v_bitop3_b32 v3, v31, v{GO+1}, v3 bitop3:0xbe"}
        v_or_b32 v2, v2, v3
        v_cmp_ne_u32 vcc, 0, v2
        s_and_b64 exec, exec, vcc
        s_cbranch_execnz L_ry
        """)
        a.label("L_ryx")
        a("s_mov_b64 exec, -1")
        stamp(12)
        a(f"""
        v_permlane32_swap_b32 v32, v34
        {"" if pc else "v_add_f32 v24, v24, v28"}
        {"" if pc else "v_add_f32 v26, v26, v30"}
        v_add_f32 v32, v32, v34
        v_mov_b32 v33, v32
        v_permlane32_swap_b32 v24, v26
        v_add_f32 v24, v24, v26
        v_permlane16_swap_b32 v32, v33
        v_mov_b32 v25, v24
        v_add_f32 v32, v32, v33
        s_nop 0
        v_permlane16_swap_b32 v24, v25
        v_add_f32_dpp v32, v32, v32 row_ror:8 row_mask:0xf bank_mask:0xf
        v_add_f32 v24, v24, v25
        v_add_f32_dpp v32, v32, v32 row_ror:4 row_mask:0xf bank_mask:0xf
        v_add_f32_dpp v24, v24, v24 row_ror:8 row_mask:0xf bank_mask:0xf
        v_add_f32_dpp v32, v32, v32 row_ror:2 row_mask:0xf bank_mask:0xf
        v_add_f32_dpp v24, v24, v24 row_ror:4 row_mask:0xf bank_mask:0xf
        v_cvt_pk_bf16_f32 v32, 0, v32
        v_mul_f32 v2, 0xbfb8aa3b, v32
        v_add_f32_dpp v24, v24, v24 row_ror:2 row_mask:0xf bank_mask:0xf
        v_exp_f32 v2, v2
        v_cvt_pk_bf16_f32 v24, 0, v24
        v_add_f32 v2, 1.0, v2
        v_rcp_f32 v2, v2
        s_mov_b64 exec, s[78:79]
        v_mul_f32 v2, v32, v2
        v_cvt_pk_bf16_f32 v2, 0, v2
        v_mul_f32 v2, v24, v2
        v_cvt_pk_bf16_f32 v2, 0, v2
        v_add_f32 v2, v106, v2
        v_cvt_pk_bf16_f32 v2, v2, v2
        buffer_store_short v2, v105, s[72:75], s71 offen
        s_cmp_lg_u32 s76, 0
        s_cbranch_scc1 L_rnb
        s_mov_b64 exec, 1
        buffer_store_dword v{GO+1}, v7, s[8:11], 0 offen sc1
        """)
    else:
        a(f"""
        s_sub_u32 s48, s5, 5
        s_cmp_ge_u32 s48, 2
        s_cbranch_scc1 L_Gend
        s_cmp_ge_u32 s4, 20
        s_cbranch_scc1 L_Gend
        s_mov_b64 exec, -1
        s_lshl_b32 s6, s4, 3
        s_add_u32 s6, s6, s49
        s_mov_b32 s40, s8
        s_mov_b32 s41, s9
        s_mov_b32 s42, {WS_T+160*3072 if inbox else T_END}
        s_mov_b32 s44, s16
        s_mov_b32 s45, s17
        s_mov_b32 s46, 1280
        v_lshrrev_b32 v3, 1, v0
        v_and_b32 v4, 1, v0
        v_mul_u32_u24 v3, {TSL}, v3
        v_lshl_add_u32 v8, v4, 4, v3
        s_mul_i32 s48, s6, {3072 if inbox else 32}
        s_add_u32 s52, s48, {WS_T}
        s_add_u32 s53, s48, {WS_T+32*TSL}
        s_add_u32 s54, s48, {WS_T+ZB}
        v_lshrrev_b32 v3, 5, v0
        v_lshl_add_u32 v4, v4, 1, v3
        v_lshlrev_b32 v9, 1, v4
        s_lshl_b32 s55, s6, 3
        buffer_load_ushort v10, v9, s[44:47], s55 offen
        v_mov_b32 v32, 0
        v_mov_b32 v34, 0
        s_mov_b32 s44, s34
        s_mov_b32 s45, s35
        s_mov_b32 s58, {SPIN}
        s_mov_b32 s56, 3
        s_mov_b32 s57, 3
        s_mov_b32 exec_hi, 0x3fffff
        """)
        a.label("L_rz")
        if zsleep: a(f"s_sleep {zsleep}")
        a(f"""
        buffer_load_dwordx4 v[32:35], v8, s[40:43], s54 offen sc1
        s_sub_u32 s58, s58, 1
        s_waitcnt vmcnt(0)
        s_cbranch_scc1 L_rzx
        v_xor_b32 v2, v33, v{GO+1}
        v_bitop3_b32 v2, v35, v{GO+1}, v2 bitop3:0xbe
        v_cmp_ne_u32 vcc, 0, v2
        s_and_b64 exec, exec, vcc
        s_cbranch_execnz L_rz
        """)
        a.label("L_rzx")
        a(f"""
        s_mov_b64 exec, -1
        buffer_load_dwordx4 v[24:27], v8, s[40:43], s52 offen sc1
        {"" if pc else "buffer_load_dwordx4 v[28:31], v8, s[40:43], s53 offen sc1"}
        v_permlane32_swap_b32 v32, v34
        v_lshlrev_b32 v10, 16, v10
        v_add_f32 v32, v32, v34
        v_mov_b32 v33, v32
        v_permlane16_swap_b32 v32, v33
        v_add_f32 v32, v32, v33
        """)
        for r in (8, 4, 2): a(f"v_add_f32_dpp v32, v32, v32 row_ror:{r} row_mask:0xf bank_mask:0xf")
        a(f"""
        v_cvt_pk_bf16_f32 v32, 0, v32
        v_mul_f32 v2, 0xbfb8aa3b, v32
        v_exp_f32 v2, v2
        v_add_f32 v2, 1.0, v2
        v_rcp_f32 v2, v2
        v_mul_f32 v2, v32, v2
        v_cvt_pk_bf16_f32 v12, 0, v2
        s_mov_b32 s58, {SPIN}
        """)
        def yload(b):
            a(f"buffer_load_dwordx4 v[{b}:{b+3}], v8, s[40:43], s52 offen sc1")
            if not pc: a(f"buffer_load_dwordx4 v[{b+4}:{b+7}], v8, s[40:43], s53 offen sc1")
        def ycheck(b):
            if pc:
                a(f"v_xor_b32 v2, v{b+1}, v{GO+1}\nv_bitop3_b32 v2, v{b+3}, v{GO+1}, v2 bitop3:0xbe\nv_cmp_ne_u32 vcc, 0, v2")
                return
            a(f"""
            v_xor_b32 v2, v{b+1}, v{GO+1}
            v_xor_b32 v3, v{b+5}, v{GO+1}
            v_bitop3_b32 v2, v{b+3}, v{GO+1}, v2 bitop3:0xbe
            v_bitop3_b32 v3, v{b+7}, v{GO+1}, v3 bitop3:0xbe
            v_or_b32 v2, v2, v3
            v_cmp_ne_u32 vcc, 0, v2
            """)
        if not dual:
            a("s_branch L_ryc")
            a.label("L_ry")
            if rsleep: a(f"s_sleep {rsleep}")
            yload(24)
            a.label("L_ryc")
            a("s_sub_u32 s58, s58, 1\ns_waitcnt vmcnt(0)\ns_cbranch_scc1 L_ryx")
            ycheck(24)
            a("s_and_b64 exec, exec, vcc\ns_cbranch_execnz L_ry")
            a.label("L_ryx")
            a("s_mov_b64 exec, -1")
            stamp(12)
            a("v_add_f32 v24, v24, v28\nv_add_f32 v26, v26, v30")
        else:
            yload(36)
            a("s_mov_b64 s[64:65], -1\ns_mov_b64 s[66:67], -1")
            a.label("L_ry")
            a("s_sub_u32 s58, s58, 1\ns_waitcnt vmcnt(" + ("1" if pc else "2") + ")\ns_cbranch_scc1 L_ryA\ns_mov_b64 exec, s[64:65]")
            ycheck(24)
            a("s_and_b64 exec, exec, vcc\ns_cbranch_execz L_ryA\ns_mov_b64 s[64:65], exec")
            yload(24)
            a("s_waitcnt vmcnt(" + ("1" if pc else "2") + ")\ns_mov_b64 exec, s[66:67]")
            ycheck(36)
            a("s_and_b64 exec, exec, vcc\ns_cbranch_execz L_ryB\ns_mov_b64 s[66:67], exec")
            yload(36)
            a("s_branch L_ry")
            a.label("L_ryB")
            a("s_mov_b64 exec, -1\n" + ("v_mov_b32 v44, v36\nv_mov_b32 v46, v38" if pc else "v_add_f32 v44, v36, v40\nv_add_f32 v46, v38, v42") + "\ns_branch L_ryx")
            a.label("L_ryA")
            a("s_mov_b64 exec, -1\n" + ("v_mov_b32 v44, v24\nv_mov_b32 v46, v26" if pc else "v_add_f32 v44, v24, v28\nv_add_f32 v46, v26, v30"))
            a.label("L_ryx")
            stamp(12)
        Y = 44 if dual else 24
        a(f"""
        s_nop 0
        v_permlane32_swap_b32 v{Y}, v{Y+2}
        v_add_f32 v{Y}, v{Y}, v{Y+2}
        v_mov_b32 v{Y+1}, v{Y}
        v_permlane16_swap_b32 v{Y}, v{Y+1}
        v_add_f32 v{Y}, v{Y}, v{Y+1}
        """)
        for r in (8, 4, 2): a(f"v_add_f32_dpp v{Y}, v{Y}, v{Y} row_ror:{r} row_mask:0xf bank_mask:0xf")
        a(f"""
        v_cvt_pk_bf16_f32 v{Y}, 0, v{Y}
        v_mul_f32 v2, v{Y}, v12
        v_cvt_pk_bf16_f32 v2, 0, v2
        v_add_f32 v2, v10, v2
        v_cvt_pk_bf16_f32 v2, v2, v2
        s_mov_b64 exec, s[56:57]
        buffer_store_short v2, v9, s[44:47], s55 offen {outsc}
        s_cmp_lg_u32 s6, 0
        s_cbranch_scc1 L_rnb
        s_mov_b64 exec, 1
        buffer_store_dword v{GO+1}, v7, s[8:11], 0 offen sc1
        """)
    if amp:
        ampmark("end")
        a("""
        s_memrealtime s[94:95]
        s_waitcnt lgkmcnt(0)
        s_sub_u32 s92, s92, s90
        s_mul_i32 s92, s92, 4
        s_min_u32 s92, s92, 100000
        s_add_u32 s94, s94, s92
        """)
        a.label("L_amp")
        a("""
        s_memrealtime s[96:97]
        s_waitcnt lgkmcnt(0)
        s_sub_u32 s92, s96, s94
        s_cmp_lt_i32 s92, 0
        s_cbranch_scc1 L_amp
        """)
    a.label("L_rnb")
    if warm: a.pad_end("L_wback")
    if stamps:
        a("s_waitcnt vmcnt(0)")
        stamp(13)
    a.label("L_Gend")
    if stamps:
        a("s_movk_i32 s48, 0xf1f\ns_cmp_ge_u32 s5, 5\ns_cselect_b32 s48, 0x301f, s48\ns_cmp_lg_u32 s3, 0\ns_cselect_b32 s48, 0x401e, s48")
        if sset == 1: a("s_bitcmp1_b32 s98, 1\ns_cselect_b32 s49, 0x1f1e, 0\ns_and_b32 s48, s48, 1\ns_or_b32 s48, s48, s49")
        flush_stamps("s48")
    a.label("L_end")
    a("s_endpgm")
    if gpre:
        a.label("L_Gnone")
        mljob()
        a("s_branch L_Gend")
    a.label("L_Amix")
    a(f"""
    buffer_store_dwordx2 v[2:3], v9, s[8:11], s54 offen sc1
    s_mov_b64 exec, s[62:63]
    buffer_store_dwordx4 v[44:47], v1, s[8:11], s55 offen sc1
    s_mov_b64 exec, -1
    s_mov_b32 s6, s50
    s_mov_b32 s58, {SPIN}
    v_mov_b32 v4, 2
    s_waitcnt vmcnt(0)
    s_atomic_swap s6, s[8:9], s49 offset:32
    """)
    a.label("L_Amp")
    a(f"""
    s_sleep {a2sleep}
    s_load_dwordx8 s[64:71], s[8:9], s52 offset:32 glc
    s_sub_u32 s58, s58, 1
    s_cbranch_scc1 L_Amg
    s_waitcnt lgkmcnt(0)
    """)
    for k in range(4): a(f"s_cmp_eq_u64 s[{64+2*k}:{65+2*k}], s[50:51]\ns_cbranch_scc0 L_Amp")
    a.label("L_Amg")
    for k in range(4): a(f"buffer_load_dwordx4 v[{24+4*k}:{27+4*k}], v1, s[8:11], s53 offen offset:{1024*k} sc1")
    a("s_branch L_A2s")

    a.raw(".p2align 6")
    a.label("L_KV")
    K0, V0 = 24, 88
    a(f"""
    s_setprio {kvprio}
    s_mov_b32 s42, 0x100000
    s_mov_b32 s46, 0x100000
    s_lshl_b32 s48, s4, 23
    s_add_u32 s48, s48, {28672*256}
    s_sub_u32 s6, s3, 4
    """)
    if hmul is None:
        kmask, kstep = 0x1ffff, 8192 * blk
        a(f"s_lshl_b32 s50, s5, 17\ns_add_u32 s48, s48, s50\ns_mul_i32 s49, s2, {rotmul}\ns_add_u32 s49, s49, s3\ns_mov_b32 s42, 0x20000\ns_mov_b32 s46, 0x20000")
    else:
        kmask, kstep = 0xfffff, 65536 * blk
        a(f"s_mul_i32 s49, s4, {hmul}\ns_lshl_b32 s50, s5, 3\ns_add_u32 s49, s49, s50\ns_add_u32 s49, s49, s6")
    a(f"""
    s_mul_i32 s52, s49, {1024*blk}
    s_and_b32 s52, s52, {kmask}
    s_mov_b32 s60, 0xcccccccc
    s_mov_b32 s61, 0xcccccccc
    s_mov_b32 s62, 0xaaaaaaaa
    s_mov_b32 s63, 0xaaaaaaaa
    v_and_b32 v3, 15, v0
    v_lshrrev_b32 v4, 4, v0
    v_lshlrev_b32 v5, 5, v3
    v_lshl_or_b32 v6, v4, 3, v5
    v_lshlrev_b32 v3, 4, v3
    s_mul_i32 s51, s5, {OBS}
    s_add_u32 s51, s51, s12
    s_add_u32 s51, s51, {WS_OB}
    """)
    for e in range(8): a(f"v_mov_b32 v{ACC+e}, 0")
    a(f"""
    s_waitcnt lgkmcnt(0)
    s_add_u32 s40, s18, s48
    s_addc_u32 s41, s19, 0
    s_add_u32 s44, s20, s48
    s_addc_u32 s45, s21, 0
    """)
    if tlb:
        a(f"""
        s_cmp_lg_u32 s6, 0
        s_cbranch_scc1 L_notlb
        s_mul_i32 s50, s4, {128*1280}
        s_add_u32 s64, s24, s50
        s_addc_u32 s65, s25, 0
        s_min_u32 s50, s4, 26
        s_mul_i32 s50, s50, {64*1280}
        s_add_u32 s66, s32, s50
        s_addc_u32 s67, s33, 0
        v_mov_b32 v12, s44
        v_mov_b32 v13, s45
        v_writelane_b32 v12, s40, 1
        v_writelane_b32 v13, s41, 1
        v_writelane_b32 v12, s64, 2
        v_writelane_b32 v13, s65, 2
        v_writelane_b32 v12, s66, 3
        v_writelane_b32 v13, s67, 3
        v_writelane_b32 v12, s8, 4
        v_writelane_b32 v13, s9, 4
        v_writelane_b32 v12, s34, 5
        v_writelane_b32 v13, s35, 5
        s_mov_b64 exec, {tlb}
        global_load_dword v14, v[12:13], off nt
        s_mov_b64 exec, -1
        """)
        a.label("L_notlb")
    if not kpre: a("s_barrier")
    if bal is not None:
        a(f"s_and_b32 s48, s2, 1\ns_mul_i32 s48, s48, {bal}\ns_cmp_lt_u32 s6, s48\ns_cselect_b64 vcc, 0, -1")
        depth0 = depth; depth = depth + 1
    if fc:
        assert max(fc["cp"]) < 16 + qpos + 3
        a("v_mov_b32 v15, 1")
    T = lambda i: f"v{K0+4*i}"
    def w_q():
        stamp(8, 2)
        lds_spin(L_QF, 1, sleep=1)
        a("s_mov_b32 s7, s48")
        stamp(9, 2)
        a(f"ds_read_b128 v[8:11], v3 offset:{L_Q}\ns_waitcnt lgkmcnt(0)")
        for i in range(16): a(f"v_dot2_f32_bf16 {T(i)}, {T(i)}, v8, 0")
        for i in range(16): a(f"v_dot2c_f32_bf16 {T(i)}, v{K0+4*i+1}, v9")
    def w_s2():
        for t in range(2, 4):
            for i in range(16): a(f"v_dot2c_f32_bf16 {T(i)}, v{K0+4*i+t}, v{8+t}")
    def w_s3():
        for k in range(8): a(f"v_add_f32_dpp {T(k)}, {T(k)}, {T(k)} row_ror:8 row_mask:0xf bank_mask:0x3")
        for k in range(8): a(f"v_add_f32_dpp {T(k)}, {T(k+8)}, {T(k+8)} row_ror:8 row_mask:0xf bank_mask:0xc")
        for k in range(4): a(f"v_add_f32_dpp {T(k)}, {T(k)}, {T(k)} row_shl:4 row_mask:0xf bank_mask:0x5")
        for k in range(4): a(f"v_add_f32_dpp {T(k)}, {T(k+4)}, {T(k+4)} row_shr:4 row_mask:0xf bank_mask:0xa")
        for k in range(4): a(f"v_add_f32_dpp {T(k)}, {T(k)}, {T(k)} quad_perm:[2,3,0,1] row_mask:0xf bank_mask:0xf")
        for k in range(2): a(f"v_cndmask_b32 {T(k)}, {T(k)}, {T(k+2)}, s[60:61]")
        for k in range(2): a(f"v_add_f32_dpp {T(k)}, {T(k)}, {T(k)} quad_perm:[1,0,3,2] row_mask:0xf bank_mask:0xf")
        a(f"""
        v_cndmask_b32 v2, {T(0)}, {T(1)}, s[62:63]
        v_cvt_pk_bf16_f32 v2, 0, v2
        v_mul_f32 v2, {SCALE}, v2
        v_cvt_pk_bf16_f32 v2, 0, v2
        v_mul_f32 v2, {LOG2E}, v2
        v_mov_b32 v14, v2
        """)
    def w_s4():
        allreduce("v_max_f32", "v14", "v3")
        a(f"""
        v_sub_f32 v2, v2, v14
        v_exp_f32 v2, v2
        s_lshl_b32 s48, s6, 3
        v_mov_b32 v4, s48
        v_mov_b32 v15, v2
        v_cvt_pk_bf16_f32 v12, v2, 0
        v_cvt_pk_bf16_f32 v13, 0, v2
        """)
        allreduce("v_add_f32", "v15", "v3")
        a(f"""
        v_mov_b32 v9, 1
        s_mov_b64 exec, 1
        ds_write_b64 v4, v[14:15] offset:{L_POST}
        ds_add_u32 v7, v9 offset:{L_C1}
        s_mov_b64 exec, -1
        """)
        stamp(6)
    def pv(i):
        for t in range(4):
            a(f"v_dot2c_f32_bf16_dpp v{ACC+2*t}, v12, v{V0+4*i+t} row_newbcast:{i} row_mask:0xf bank_mask:0xf")
            a(f"v_dot2c_f32_bf16_dpp v{ACC+2*t+1}, v13, v{V0+4*i+t} row_newbcast:{i} row_mask:0xf bank_mask:0xf")
    chunks = [w_q, w_s2, w_s3, w_s4]
    assert depth - 1 <= qpos <= 11
    pv_done = 0
    for n in range(32):
        if kpre and n == kpre: a("s_barrier")
        if dsched and n in dsched: depth = dsched[n]
        t, i = divmod(n, 16)
        r = (K0, V0)[t] + 4 * i
        srd = ("s[40:43]", "s[44:47]")[t]
        if warm and warmkv and n == 12: a.pad_start("PK1", warm)
        if warm and warmkv and n == 16 + qpos + 5:
            a.pad_end("L_wback"); a.pad_start("PK2", warm)
        if bal is not None and n >= depth0:
            if n < balfrom: a(f"s_waitcnt vmcnt({depth0-1})")
            else:
                L = a.newlabel("Lb")
                a(f"s_waitcnt vmcnt({depth-1})\ns_cbranch_vccz {L}\ns_waitcnt vmcnt({depth0-1})")
                a.label(L)
        elif fc and n > fc["cp"][1] + 1:
            L = a.newlabel("Lf")
            a(f"s_waitcnt vmcnt({depth-1}) lgkmcnt(0)\nv_readfirstlane_b32 s53, v5\ns_cmp_gt_u32 s53, {n}\ns_cbranch_scc0 {L}\ns_waitcnt vmcnt({fc['dlow']-1})")
            a.label(L)
        elif n >= depth: a(f"s_waitcnt vmcnt({depth-1})")
        a(f"buffer_load_dwordx4 v[{r}:{r+3}], v1, {srd}, s52 offen offset:{(i%blk)*1024} nt")
        if fc and fc["cp"][1] + 1 <= n < 31: a(f"ds_read_b32 v5, v7 offset:{L_HOLD}")
        if fc and n in fc["cp"]: a(f"s_mov_b64 exec, 1\nds_add_u32 v7, v15 offset:{L_PC}\ns_mov_b64 exec, -1")
        if sset == 4 and n in (4, 6, 8, 12, 16, 20, 24, 28): stamp({4:1, 6:2, 8:3, 12:4, 16:8, 20:9, 24:10, 28:11}[n], 4)
        if n < 31 and (i % blk) == blk - 1: a(f"s_add_u32 s52, s52, {kstep}\ns_and_b32 s52, s52, {kmask}")
        if n == ispos:
            assert not chunks
            a(f"s_mov_b64 exec, 1\nds_add_u32 v7, v9 offset:{L_IS}\ns_mov_b64 exec, -1")
        if n == 31:
            stamp(5)
            break
        if n >= 16 + qpos:
            if chunks: chunks.pop(0)()
            else:
                avail = n - depth - 16 + 1
                k = max(pv_done, min(avail, pv_done + 4))
                for q in range(pv_done, k): pv(q)
                pv_done = k
    a("v_and_b32 v3, 7, v0\nv_lshlrev_b32 v3, 3, v3")
    stamp(10, 2)
    lds_spin(L_C1, 8, sleep=1)
    stamp(11, 2)
    a(f"""
    ds_read_b32 v2, v3 offset:{L_POST}
    s_waitcnt lgkmcnt(0)
    """)
    for r in (4, 2, 1): a(f"v_max_f32_dpp v2, v2, v2 row_ror:{r} row_mask:0xf bank_mask:0xf")
    a("v_sub_f32 v15, v14, v2\nv_exp_f32 v15, v15")
    a(f"""
    v_lshlrev_b32 v5, 3, v0
    s_lshl_b32 s49, s6, 9
    v_add_u32 v4, s49, v5
    """)
    stamp(12, 2)
    for q in range(pv_done, 16):
        if q >= 16 - depth: a(f"s_waitcnt vmcnt({15-q})")
        pv(q)
    stamp(15); stamp(15, 2); stamp(15, 4)
    if 'v' not in no:
        for e in range(4): a(f"v_permlane32_swap_b32 {A(e)}, {A(e+4)}")
        for e in range(4): a(f"v_add_f32 {A(e)}, {A(e)}, {A(e+4)}")
        for e in range(2): a(f"v_permlane16_swap_b32 {A(e)}, {A(e+2)}")
        for e in range(2): a(f"v_add_f32 {A(e)}, {A(e)}, {A(e+2)}")
    a(f"""
    v_mul_f32 {A(0)}, {A(0)}, v15
    v_mul_f32 {A(1)}, {A(1)}, v15
    ds_write_b64 v4, v[{ACC}:{ACC+1}] offset:{L_OACC}
    s_mov_b64 exec, 1
    ds_add_rtn_u32 v2, v7, v9 offset:{L_C2}
    s_mov_b64 exec, -1
    """)
    rd = f"""
    ds_read2st64_b64 v[24:27], v5 offset0:{L_OACC//512} offset1:{L_OACC//512+1}
    ds_read2st64_b64 v[28:31], v5 offset0:{L_OACC//512+2} offset1:{L_OACC//512+3}
    ds_read2st64_b64 v[32:35], v5 offset0:{L_OACC//512+4} offset1:{L_OACC//512+5}
    ds_read2st64_b64 v[36:39], v5 offset0:{L_OACC//512+6} offset1:{L_OACC//512+7}
    """
    if spec: a(rd + "s_waitcnt lgkmcnt(4)" if not stamps or True else "")
    else: a("s_waitcnt lgkmcnt(0)")
    a(f"""
    v_readfirstlane_b32 s48, v2
    s_cmp_lg_u32 s48, 7
    s_cbranch_scc1 L_notlast
    """)
    if not spec: a(rd)
    a(f"""
    s_waitcnt lgkmcnt(2)
    v_pk_add_f32 v[24:25], v[24:25], v[26:27]
    v_pk_add_f32 v[28:29], v[28:29], v[30:31]
    v_pk_add_f32 v[24:25], v[24:25], v[28:29]
    s_waitcnt lgkmcnt(0)
    v_pk_add_f32 v[32:33], v[32:33], v[34:35]
    v_pk_add_f32 v[36:37], v[36:37], v[38:39]
    v_pk_add_f32 v[24:25], v[24:25], v[32:33]
    v_pk_add_f32 v[24:25], v[24:25], v[36:37]
    """)
    mstore("buffer_store_dwordx2 v[24:25], v6, s[8:11], s51 offen")
    a(f"ds_write_b32 v7, v9 offset:{L_OPF}")
    if warm and warmkv: a.pad_end("L_wback")
    stamp(7); flush_stamps("0xfffe")
    a("s_endpgm")
    a.label("L_notlast")
    a.label("L_end3")
    flush_stamps("0x4000" if sset == 0 else "0")
    a.label("L_last")
    a("s_endpgm")
    nv = 160 if stamps else 152
    a.raw('.section .rodata,"a"'); a.raw(".p2align 6"); a.raw(f".amdhsa_kernel {KN}")
    a.raw(f"  .amdhsa_next_free_vgpr {nv}"); a.raw("  .amdhsa_next_free_sgpr 100"); a.raw(f"  .amdhsa_accum_offset {(nv+3)//4*4}")
    a.raw("  .amdhsa_group_segment_fixed_size 0"); a.raw("  .amdhsa_kernarg_size 96"); a.raw("  .amdhsa_user_sgpr_count 2")
    a.raw("  .amdhsa_user_sgpr_kernarg_segment_ptr 1"); a.raw("  .amdhsa_system_sgpr_workgroup_id_x 1"); a.raw(".end_amdhsa_kernel")
    open(path, "w").write(a.text())

if __name__ == "__main__":
    F=[0,2,4]
    gen("f0.s", ftab=F)
    gen("f1.s", ftab=F, xpos=2)
    gen("f2.s", ftab=F, xpos=5)
    gen("f3.s", ftab=F, kpre=1)
    gen("f4.s", ftab=F, kpre=2)
    gen("f5.s", ftab=F, kpre=4)
    gen("f6.s", ftab=F, cpf=False)
```

```python
import gen16 as g, sys
P=dict(ftab=[0,2,4], pfl="sc1", blk=4, hmul=4, gdepth=5, xpos=5, qpos=7, rd2=True, pc=True, SPIN=2000000)
doc='''; ---------------------------------------------------------------------------------------------
;  write-through; the cross-group partial sums always travel write-through as {value,tag} pairs.
; ---------------------------------------------------------------------------------------------
'''
g.gen("v6.s", **P)
g.gen("v6lin.s", xmap=0, **P)
g.gen("v6fm.s", forcemixed=True, **P)
s=open("v6.s").read()
i=s.index(".amdgcn_target")
open("recurrent_scan__sliding_block_cached__swiglu_ffn__decode.s","w").write(s[:i]+doc+s[i:])
```

```python
import sys
sys.path.insert(0, "gen")
from asmlib import Asm
KN = "recurrent_scan__sliding_block_cached__swiglu_ffn__decode_kernel"
HDR = open("recurrent_scan__sliding_block_cached__swiglu_ffn__decode.s.ref").read().split("; Override launch")[0]

GS = 3 * 4096 + 256
WS_E, WS_G = 0, 0x1000
WS_OA, WS_OB, WS_F = WS_G, WS_G + 4096, WS_G + 9216
OBS = 640
WS_T = 0x80000
TS = 5120
T_END = WS_T + 91 * TS
L_QF, L_C1, L_C2, L_TAG, L_OPF, L_CA, L_IS, L_PC, L_HOLD, L_POST = 0, 4, 8, 12, 16, 20, 24, 28, 32, 64
L_Q, L_H, L_AACC, L_OACC = 256, 512, 1024, 2048
L_PCN = 40
L_PCD = L_AACC + 512
L_GO = L_AACC
LDS_BYTES = 6144
LOG2E = "0x3fb8aa3b"
SCALE = "0x3db504f3"

def gen(path, stamps=False, rotmul=5, a2sleep=8, sset=0, cpf=True, gwait=8, perwave=False, depth=4, qpos=8, gdepth=4,
        blk=1, xmap=2, SPIN=20000, forcemixed=False, ispos=31, zfirst=True, psleep=0, pfl='sc1', gpre=0, gpd=1, zwait=0, no='', warm=0, warmkv=True, amp=None, gstep=0, spec=True, hmul=None, inbox=False, dual=False, outsc='', apat=0, gpat=0, bal=None, balfrom=4, ftab=None, dsched=None, abar=None, adepth=None, tlb=0, fc=None, rd2=False, rsleep=0, zsleep=0, xpos=0, kpre=0, flate=0, issleep=2, opfsleep=0, kvprio=1, aprio=3, pc=False):
    a = Asm()
    a.raw(HDR.rstrip())
    a.raw(f"; @launch grid=(256,1,1) block=(768,1,1) lds={LDS_BYTES}")
    if perwave: a.raw("; nstamp=3072")
    a.raw('.amdgcn_target "amdgcn-amd-amdhsa--gfx950"')
    a.raw(".text"); a.raw(f".globl {KN}"); a.raw(".p2align 8"); a.raw(f".type {KN},@function"); a.raw(f"{KN}:")
    def stamp(i, ss=0):
        if stamps and (ss == sset or (ss == 0 and (i < 8 or i == 13 or sset == 3))):
            a(f"s_memrealtime s[96:97]\ns_waitcnt lgkmcnt(0)\ns_mov_b32 s{80+i}, s96\ns_bitset1_b32 s98, {i}")
    def flush_stamps(mask):
        if not stamps: return
        a("s_mov_b64 exec, -1\nv_lshlrev_b32 v154, 3, v0\nv_mov_b32 v153, 0")
        if perwave:
            a("s_mul_i32 s59, s2, 12\ns_add_u32 s59, s59, s3\ns_lshl_b32 s59, s59, 7\ns_add_u32 s59, s59, 0x20000000")
            mask = "0xffff"
        else:
            a("s_lshl_b32 s59, s2, 7\ns_add_u32 s59, s59, 0x20000000")
        for i in range(16): a(f"v_writelane_b32 v152, s{80+i}, {i}")
        L = a.newlabel("Lfl")
        a(f"s_and_b32 s98, s98, {mask}\ns_mov_b32 s99, 0\ns_cbranch_scc0 {L}\ns_mov_b64 exec, s[98:99]\nbuffer_store_dwordx2 v[152:153], v154, s[8:11], s59 offen")
        a.label(L)
    def allreduce(op, v, t):
        for r in (8, 4, 2, 1):
            a(f"{op}_dpp {v}, {v}, {v} row_ror:{r} row_mask:0xf bank_mask:0xf")
        a(f"v_mov_b32 {t}, {v}\nv_permlane16_swap_b32 {t}, {v}\n{op} {v}, {t}, {v}")
        a(f"v_mov_b32 {t}, {v}\nv_permlane32_swap_b32 {t}, {v}\n{op} {v}, {t}, {v}")
    def lds_spin(off, val, sleep=2):
        L = a.newlabel("Lsp"); X = a.newlabel("Lspx")
        a(f"s_mov_b32 s58, {SPIN}")
        a.label(L)
        a(f"ds_read_b32 v2, v7 offset:{off}\ns_waitcnt lgkmcnt(0)\nv_readfirstlane_b32 s48, v2\ns_cmp_ge_u32 s48, {val}\ns_cbranch_scc1 {X}")
        a((f"s_sleep {sleep}\n" if sleep else "") + f"s_sub_u32 s58, s58, 1\ns_cbranch_scc0 {L}")
        a.label(X)
    def mstore(text):
        L = a.newlabel("Lms"); X = a.newlabel("Lmx")
        a(f"s_cmp_eq_u32 s7, 1\ns_cbranch_scc0 {L}\n{text}\ns_branch {X}")
        a.label(L)
        a(f"{text} sc1")
        a.label(X)
    ACC = 16
    A = lambda e: f"v{ACC+e}"

    if stamps:
        a("s_mov_b32 s98, 0")
        stamp(0)
    if amp: a("s_memrealtime s[90:91]")
    def ampmark(name):
        if amp == name: a("s_memrealtime s[92:93]\ns_waitcnt lgkmcnt(0)")
    a(f"""
    s_cmp_ge_u32 s2, 256
    s_cbranch_scc1 L_end
    s_load_dwordx16 s[16:31], s[0:1], 0
    s_load_dwordx4 s[32:35], s[0:1], 64
    s_load_dwordx2 s[8:9], s[0:1], 88
    """)
    if cpf:
        a("v_lshlrev_b32 v2, 7, v0\ns_getpc_b64 s[48:49]")
        a.label("L_pc")
        a(f"""
        v_cmp_gt_u32 vcc, L_last-L_pc, v2
        s_and_saveexec_b64 s[50:51], vcc
        s_cbranch_execz L_nocpf
        global_load_dword v151, v2, s[48:49]
        """)
        a.label("L_nocpf")
        a("s_mov_b64 exec, -1")
    a(f"""
    v_lshrrev_b32 v1, 6, v0
    v_and_b32 v0, 63, v0
    v_readfirstlane_b32 s3, v1
    v_lshlrev_b32 v1, 4, v0
    v_mov_b32 v7, 0
    """)
    if xmap == 2:
        a("s_bfe_u32 s5, s2, 0x30003\ns_lshr_b32 s4, s2, 6\ns_lshl_b32 s4, s4, 3\ns_and_b32 s6, s2, 7\ns_add_u32 s4, s4, s6")
    else:
        a("s_lshr_b32 s4, s2, 3\ns_add_u32 s5, s2, s4\ns_and_b32 s5, s5, 7")
    a(f"""
    s_mov_b32 s43, 0x20000
    s_mov_b32 s47, 0x20000
    s_mov_b32 s10, 0x40000000
    s_mov_b32 s11, 0x20000
    s_mul_i32 s12, s4, {GS}
    s_cmp_ge_u32 s3, 4
    s_cbranch_scc1 L_KV
    """)
    W0 = 24
    a(f"""
    s_setprio {aprio}
    v_mov_b32 v4, 0
    v_mov_b32 v5, 0
    v_mov_b32 v6, 0
    s_and_b32 s7, s5, 1
    ds_write_b128 v1, v[4:7]
    ds_write_b128 v1, v[4:7] offset:1024
    s_and_b32 s13, s3, 1
    s_and_b32 s14, s5, 6
    s_add_u32 s14, s14, s13
    s_mul_i32 s14, s14, 80
    v_mul_u32_u24 v2, 20, v0
    v_lshrrev_b32 v3, 3, v0
    v_mul_u32_u24 v4, 20, v3
    v_and_b32 v5, 7, v0
    v_lshlrev_b32 v6, 4, v5
    s_lshl_b32 s48, s14, 1
    s_mov_b32 s46, 1280
    """)
    if ftab is None: a("s_mov_b32 s36, s4")
    else:
        tab = 0
        for x in range(8): tab |= (ftab.index(x) if x in ftab else 7) << (4 * x)
        a(f"s_lshl_b32 s36, s4, 2\ns_lshr_b32 s36, {hex(tab)}, s36\ns_and_b32 s36, s36, 7\ns_add_u32 s36, s36, 24\ns_cmp_lt_u32 s4, 24\ns_cselect_b32 s36, s4, s36")
    a(f"""
    s_lshl_b32 s53, s36, 7
    s_lshl_b32 s54, s7, 7
    s_lshl_b32 s55, s4, 8
    s_add_u32 s54, s54, s55
    s_movk_i32 s52, 8192
    s_cmp_ge_u32 s3, 2
    s_cselect_b32 s52, 3456, s52
    s_cselect_b32 s53, s53, s54
    s_mul_i32 s42, s52, 640
    s_mul_i32 s49, s52, {1 if apat == 1 else 10}
    {'s_lshl_b32 s51, s52, 3' if apat == 1 else 's_mov_b32 s51, s52'}
    s_mul_i32 s54, s14, s52
    s_add_u32 s53, s53, s54
    v_mad_u32_u24 v6, v3, s49, v6
    """)
    if apat == 2:
        a("""
        v_mov_b32 v6, v1
        s_movk_i32 s51, 1024
        s_lshl_b32 s53, s4, 4
        s_lshl_b32 s54, s5, 1
        s_add_u32 s53, s53, s54
        s_add_u32 s53, s53, s13
        s_lshl_b32 s54, s36, 3
        s_and_b32 s55, s5, 6
        s_add_u32 s54, s54, s55
        s_add_u32 s54, s54, s13
        s_cmp_ge_u32 s3, 2
        s_cselect_b32 s53, s54, s53
        s_mul_i32 s53, s53, 10240
        """)
    if apat == 3:
        a("""
        s_cmp_ge_u32 s3, 2
        s_cbranch_scc1 L_ap3
        v_lshrrev_b32 v6, 4, v0
        v_mul_u32_u24 v6, 0x14000, v6
        v_and_b32 v8, 15, v0
        v_lshl_add_u32 v6, v8, 4, v6
        s_lshl_b32 s53, s5, 1
        s_add_u32 s53, s53, s13
        s_mul_i32 s53, s53, 0x50000
        s_lshl_b32 s54, s4, 8
        s_add_u32 s53, s53, s54
        """)
        a.label("L_ap3")
    a(f"""
    s_cmp_ge_u32 s36, 27
    s_cselect_b32 s15, 2, 4
    s_cmp_eq_u32 s7, 0
    s_waitcnt lgkmcnt(0)
    s_cselect_b32 s40, s28, s30
    s_cselect_b32 s41, s29, s31
    s_cmp_ge_u32 s3, 2
    s_cselect_b32 s40, s40, s22
    s_cselect_b32 s41, s41, s23
    s_mov_b32 s44, s16
    s_mov_b32 s45, s17
    """)
    if flate:
        a("""
        s_mov_b32 s72, s40
        s_mov_b32 s73, s41
        s_mov_b32 s74, s42
        s_mov_b32 s75, 0x20000
        s_mov_b32 s76, s53
        s_mov_b32 s77, s51
        v_mov_b32 v115, v6
        s_cmp_lt_u32 s3, s15
        s_cselect_b32 s37, 1, 0
        s_cmp_lt_u32 s3, 2
        s_cselect_b32 s37, 0, s37
        s_mov_b32 s15, 2
        """)
    a(f"""
    s_cmp_ge_u32 s3, s15
    s_cbranch_scc1 L_Anoload
    """)
    for i in range(10):
        if i == xpos:
            a("""
            buffer_load_dwordx4 v[104:107], v2, s[44:47], 0 offen
            buffer_load_dword v108, v2, s[44:47], 0 offen offset:16
            buffer_load_dwordx4 v[110:113], v4, s[44:47], s48 offen
            buffer_load_dword v114, v4, s[44:47], s48 offen offset:16
            """)
        a(f"buffer_load_dwordx4 v[{W0+4*i}:{W0+4*i+3}], v6, s[40:43], s53 offen nt")
        if i < 9: a("s_add_u32 s53, s53, s51")
    if abar is not None: a(f"s_waitcnt vmcnt({abar})")
    a.label("L_Anoload")
    a("s_barrier")
    ampmark("bar")
    stamp(8, 1)
    a(f"""
    s_load_dword s50, s[8:9], {WS_E}
    v_lshl_add_u32 v9, v5, 3, v3
    v_lshlrev_b32 v9, 3, v9
    v_lshlrev_b32 v8, 2, v0
    s_cmp_ge_u32 s3, s15
    s_cbranch_scc1 L_Adone
    s_mov_b32 s56, 0xffff0000
    s_mov_b32 s60, 0x05040100
    s_mov_b32 s61, 0x07060302
    s_lshl_b32 s49, s3, 8
    v_add_u32 v10, s49, v8
    """)
    for e in range(8): a(f"v_mov_b32 v{ACC+e}, 0")
    a(f"s_waitcnt vmcnt({12-xpos})")
    ampmark("x")
    stamp(9, 1)
    for k in range(5):
        a(f"v_lshlrev_b32 v{120+2*k}, 16, v{104+k}\nv_and_b32 v{121+2*k}, s56, v{104+k}")
    a("v_add_f32 v2, v120, v121")
    for k in range(2, 10): a(f"v_add_f32 v2, v2, v{120+k}")
    allreduce("v_add_f32", "v2", "v4")
    a("v_mul_f32 v2, 0x3acccccd, v2")
    for k in range(10): a(f"v_sub_f32 v{120+k}, v{120+k}, v2")
    a("v_mul_f32 v5, v120, v120")
    for k in range(1, 10): a(f"v_fmac_f32 v5, v{120+k}, v{120+k}")
    allreduce("v_add_f32", "v5", "v4")
    a(f"""
    v_mul_f32 v5, 0x3acccccd, v5
    v_cvt_pk_bf16_f32 v2, 0, v2
    v_cvt_pk_bf16_f32 v5, 0, v5
    v_add_f32 v5, 0x3727c5ac, v5
    v_cvt_pk_bf16_f32 v5, 0, v5
    v_sqrt_f32 v5, v5
    v_cvt_pk_bf16_f32 v5, 0, v5
    v_rcp_f32 v5, v5
    s_waitcnt vmcnt({10-xpos})
    """)
    for k in range(5):
        x = 110 + k
        a(f"""
        v_lshlrev_b32 v120, 16, v{x}
        v_and_b32 v121, s56, v{x}
        v_sub_f32 v120, v120, v2
        v_sub_f32 v121, v121, v2
        v_cvt_pk_bf16_f32 v120, 0, v120
        v_cvt_pk_bf16_f32 v121, 0, v121
        v_mul_f32 v120, v120, v5
        v_mul_f32 v121, v121, v5
        v_cvt_pk_bf16_f32 v{130+k}, v120, v121
        """)
    stamp(10, 1)
    for k in range(5):
        a(f"s_waitcnt vmcnt({8-2*k})")
        if k == 4: stamp(11, 1); stamp(11, 4)
        if k == 2: stamp(10, 4)
        for t in range(4):
            lo, hi = W0 + 8 * k + t, W0 + 8 * k + 4 + t
            a(f"v_perm_b32 v{140+t}, v{hi}, v{lo}, s61\nv_perm_b32 v{lo}, v{hi}, v{lo}, s60")
        for t in range(4):
            lo = W0 + 8 * k + t
            a(f"v_dot2c_f32_bf16 {A(2*t)}, v{lo}, v{130+k}\nv_dot2c_f32_bf16 {A(2*t+1)}, v{140+t}, v{130+k}")
    for e in range(4): a(f"v_permlane32_swap_b32 {A(e)}, {A(e+4)}")
    for e in range(4): a(f"v_add_f32 {A(e)}, {A(e)}, {A(e+4)}")
    for e in range(2): a(f"v_permlane16_swap_b32 {A(e)}, {A(e+2)}")
    for e in range(2): a(f"v_add_f32 {A(e)}, {A(e)}, {A(e+2)}")
    a(f"""
    v_add_f32_dpp {A(0)}, {A(0)}, {A(0)} row_ror:8 row_mask:0xf bank_mask:0x3
    v_add_f32_dpp {A(0)}, {A(1)}, {A(1)} row_ror:8 row_mask:0xf bank_mask:0xc
    ds_write_b32 v10, {A(0)} offset:{L_AACC}
    """)
    a.label("L_Adone")
    ampmark("adone")
    a(f"""
    v_mov_b32 v4, 1
    s_mov_b64 exec, 1
    ds_add_rtn_u32 v2, v7, v4 offset:{L_CA}
    s_mov_b64 exec, -1
    ds_read2st64_b32 v[24:25], v8 offset0:{L_AACC//256} offset1:{L_AACC//256+2}
    ds_read2st64_b32 v[26:27], v8 offset0:{L_AACC//256+1} offset1:{L_AACC//256+3}
    s_lshl_b32 s49, s5, 9
    s_add_u32 s53, s12, {WS_OA}
    s_add_u32 s54, s53, s49
    s_mul_i32 s55, s5, {OBS}
    s_add_u32 s55, s55, s12
    s_add_u32 s55, s55, {WS_OB}
    v_mov_b32 v44, -1
    v_mov_b32 v45, -1
    v_mov_b32 v46, -1
    v_mov_b32 v47, -1
    s_mov_b32 s62, -1
    s_movk_i32 s63, 0xff
    s_waitcnt lgkmcnt(0)
    v_readfirstlane_b32 s48, v2
    v_add_f32 v2, v24, v26
    v_add_f32 v3, v25, v27
    s_cmp_lg_u32 s48, 3
    s_cbranch_scc1 L_G
    buffer_store_dwordx2 v[2:3], v9, s[8:11], s54 offen
    s_mov_b64 exec, s[62:63]
    buffer_store_dwordx4 v[44:47], v1, s[8:11], s55 offen
    s_mov_b64 exec, -1
    """)
    stamp(1)
    a(f"""
    s_getreg_b32 s56, hwreg(HW_REG_XCC_ID, 0, 4)
    s_mul_i32 s50, s50, 0x9e3779b1
    s_add_u32 s50, s50, 0x7f4a7c15
    s_mov_b32 s51, s50
    {"s_mov_b32 s56, s5" if forcemixed else ""}
    s_add_u32 s56, s56, s50
    s_mov_b32 s57, s56
    s_mov_b32 s6, s56
    s_add_u32 s52, s12, {WS_F}
    s_lshl_b32 s49, s5, 2
    s_add_u32 s49, s49, s52
    s_mov_b32 s58, {SPIN}
    s_waitcnt vmcnt(0)
    {"" if 'F' in no else "s_atomic_swap s6, s[8:9], s49"}
    """)
    if 'P' in no: a("s_sleep 60\ns_branch L_A2g")
    stamp(2)
    a.label("L_A2p")
    a(f"""
    s_sleep {a2sleep}
    s_load_dwordx8 s[64:71], s[8:9], s52 glc
    s_sub_u32 s58, s58, 1
    s_cbranch_scc1 L_A2g
    s_waitcnt lgkmcnt(0)
    """)
    for k in range(8): a(f"s_sub_u32 s48, s{64+k}, s50\ns_cmp_ge_u32 s48, 16\ns_cbranch_scc1 L_A2p")
    for k in range(4): a(f"s_cmp_eq_u64 s[{64+2*k}:{65+2*k}], s[56:57]\ns_cbranch_scc0 L_Amix")
    a.label("L_A2g")
    stamp(3)
    for k in range(4): a(f"buffer_load_dwordx4 v[{24+4*k}:{27+4*k}], v1, s[8:11], s53 offen offset:{1024*k} nt")
    a.label("L_A2s")
    a("s_waitcnt vmcnt(0) lgkmcnt(0)")
    for e in range(4): a(f"v_add_f32 v{24+e}, v{24+e}, v{28+e}\nv_add_f32 v{32+e}, v{32+e}, v{36+e}")
    for e in range(4): a(f"v_add_f32 v{24+e}, v{24+e}, v{32+e}")
    a(f"""
    v_cvt_pk_bf16_f32 v28, v24, v26
    v_cvt_pk_bf16_f32 v25, 0, v25
    v_cvt_pk_bf16_f32 v27, 0, v27
    ds_write_b32 v8, v28 offset:{L_Q}
    v_mov_b32 v29, v25
    v_mov_b32 v30, v27
    v_permlane32_swap_b32 v25, v29
    v_permlane32_swap_b32 v27, v30
    v_mul_f32 v32, 0xbfb8aa3b, v25
    v_mul_f32 v33, 0xbfb8aa3b, v27
    v_exp_f32 v32, v32
    v_exp_f32 v33, v33
    v_add_f32 v32, 1.0, v32
    v_add_f32 v33, 1.0, v33
    v_rcp_f32 v32, v32
    v_rcp_f32 v33, v33
    v_mul_f32 v32, v25, v32
    v_mul_f32 v33, v27, v33
    v_cvt_pk_bf16_f32 v32, 0, v32
    v_cvt_pk_bf16_f32 v33, 0, v33
    v_mul_f32 v32, v32, v29
    v_mul_f32 v33, v33, v30
    v_cvt_pk_bf16_f32 v28, v32, v33
    v_mov_b32 v3, s50
    ds_write_b32 v8, v28 offset:{L_H}
    s_mov_b64 exec, 1
    ds_write_b32 v7, v3 offset:{L_TAG}
    ds_write_b32 v7, v4 offset:{L_QF}
    s_mov_b64 exec, -1
    """)
    stamp(4)
    if warm:
        a("s_branch L_G2")
        a.label("L_G")
        a("s_mov_b64 exec, 0")
        if warmkv: a("s_cmp_eq_u32 s48, 0\ns_cbranch_scc1 PK1_0\ns_cmp_eq_u32 s48, 1\ns_cbranch_scc1 PK2_0")
        a("s_branch PG_0")
        a.label("L_wback")
        a("s_mov_b64 exec, -1")
        a.label("L_G2")
    else:
        if fc: a("s_branch L_G2")
        a.label("L_G")
        if fc:
            a("s_cmp_lg_u32 s48, 0\ns_cbranch_scc1 L_G2")
            import struct
            f2h = lambda x: hex(struct.unpack("<I", struct.pack("<f", x))[0])
            WS_P = 0x200
            thr = fc.get("thr", 4)
            a(f"""
            s_mul_i32 s50, s50, 0x9e3779b1
            s_add_u32 s50, s50, 0x7f4a7c15
            v_mul_u32_u24 v3, {fc.get('pstride', 64)}, v0
            s_mul_i32 s51, s4, {fc.get('pstride', 64)}
            s_add_u32 s51, s51, {WS_P}
            v_mov_b32 v4, s50
            """)
            lds_spin(L_PC, thr, sleep=2)
            a(f"""
            s_memrealtime s[52:53]
            s_cmp_lg_u32 s5, {fc.get('rep', 0)}
            s_waitcnt lgkmcnt(0)
            s_cbranch_scc1 L_fc1
            v_mov_b32 v5, s52
            s_mov_b64 exec, 1
            buffer_store_dwordx2 v[4:5], v7, s[8:11], s51 offen sc1
            s_mov_b64 exec, -1
            """)
            a.label("L_fc1")
            lds_spin(L_PC, 8 + thr, sleep=2)
            a(f"""
            s_movk_i32 s51, {WS_P}
            s_mov_b32 exec_hi, 0
            buffer_load_dwordx2 v[10:11], v3, s[8:11], s51 offen sc1
            s_mov_b64 exec, -1
            v_mov_b32 v12, {f2h(fc.get('miss', 120.0))}
            s_waitcnt vmcnt(0)
            v_subrev_u32 v11, s52, v11
            v_cmp_eq_u32 vcc, s50, v10
            v_cvt_f32_i32 v11, v11
            v_cndmask_b32 v11, v12, v11, vcc
            """)
            a(f"""
            v_add_f32_dpp v11, v11, v11 row_ror:8 row_mask:0xf bank_mask:0xf
            v_mov_b32 v12, v11
            v_permlane16_swap_b32 v12, v11
            v_add_f32 v11, v12, v11
            s_and_b32 s53, s4, 7
            v_readlane_b32 s54, v11, s53
            """)
            for r in (4, 2, 1): a(f"v_add_f32_dpp v11, v11, v11 row_ror:{r} row_mask:0xf bank_mask:0xf")
            a(f"""
            v_mov_b32 v12, s54
            v_mul_f32 v12, {f2h(-8.0 * fc.get('xw', 1.0))}, v12
            v_add_f32 v11, v11, v12
            v_add_f32 v11, {f2h(32.0 * fc.get('bias', 0.0))}, v11
            v_mul_f32 v11, {f2h(fc['gain'] / 32.0)}, v11
            v_max_f32 v11, 0, v11
            v_min_f32 v11, {f2h(float(fc.get('kmax', 11)))}, v11
            v_cvt_u32_f32 v11, v11
            v_cmp_ne_u32 vcc, 0, v11
            v_add_u32 v11, {fc['cp'][1] + fc['lag']}, v11
            v_cndmask_b32 v11, 0, v11, vcc
            s_mov_b64 exec, 1
            ds_write_b32 v7, v11 offset:{L_HOLD}
            s_mov_b64 exec, -1
            """)
            a.label("L_G2")
    GW, GG, GP, GM, GO = 24, 56, 72, 64, 76
    def mljob():
        LX = a.newlabel('Lml')
        a(f"""
        s_cmp_lg_u32 s3, 3
        s_cbranch_scc1 {LX}
        v_and_b32 v113, 7, v0
        v_lshlrev_b32 v113, 3, v113
        s_mul_i32 s51, s5, {OBS}
        s_add_u32 s51, s51, s12
        s_add_u32 s51, s51, {WS_OB}
        """)
        lds_spin(L_C1, 8, sleep=2)
        a(f"""
        ds_read_b64 v[110:111], v113 offset:{L_POST}
        ds_read_b32 v114, v7 offset:{L_QF}
        s_waitcnt lgkmcnt(0)
        v_mov_b32 v112, v110
        v_readfirstlane_b32 s7, v114
        """)
        for r in (4, 2, 1): a(f"v_max_f32_dpp v112, v112, v112 row_ror:{r} row_mask:0xf bank_mask:0xf")
        a("v_sub_f32 v110, v110, v112\nv_exp_f32 v110, v110\nv_mul_f32 v113, v110, v111")
        for r in (4, 2, 1): a(f"v_add_f32_dpp v113, v113, v113 row_ror:{r} row_mask:0xf bank_mask:0xf")
        a("s_mov_b64 exec, 1")
        mstore("buffer_store_dwordx2 v[112:113], v7, s[8:11], s51 offen offset:512")
        a("s_mov_b64 exec, -1")
        if sset != 3: stamp(14)
        a.label(LX)
    if not gpre: mljob()
    a(f"""
    v_lshrrev_b32 v3, 3, v0
    v_and_b32 v4, 7, v0
    v_lshlrev_b32 v5, 4, v4
    s_movk_i32 s49, {1280 if gpat == 1 else 10240}
    v_mad_u32_u24 v8, v3, s49, v5
    """)
    if inbox:
        a("v_lshrrev_b32 v10, 5, v0\nv_lshl_add_u32 v10, v4, 1, v10\nv_mul_u32_u24 v10, 3072, v10\nv_and_b32 v2, 16, v0\nv_add_u32 v10, v10, v2")
    else:
        a("v_lshrrev_b32 v10, 4, v0\nv_lshl_add_u32 v10, v4, 2, v10\nv_lshlrev_b32 v10, 4, v10")
    if rd2:
        assert not inbox
        a(f"""
        s_mov_b32 s76, -1
        s_mov_b32 s64, s8
        s_mov_b32 s65, s9
        s_mov_b32 s66, {T_END}
        s_mov_b32 s67, 0x20000
        s_mov_b32 s72, s34
        s_mov_b32 s73, s35
        s_mov_b32 s74, 1280
        s_mov_b32 s75, 0x20000
        s_mov_b32 s78, 3
        s_mov_b32 s79, 3
        v_lshrrev_b32 v104, 1, v0
        v_and_b32 v105, 1, v0
        v_mul_u32_u24 v104, {TS}, v104
        v_lshl_add_u32 v104, v105, 4, v104
        v_lshrrev_b32 v2, 5, v0
        v_lshl_add_u32 v105, v105, 1, v2
        v_lshlrev_b32 v105, 1, v105
        """)
    TSL = 32 if inbox else TS
    ZB = 2048 if inbox else 64 * TS
    a(f"""
    s_cmp_ge_u32 s5, 5
    s_cbranch_scc1 L_Gd
    s_mov_b32 s40, s24
    s_mov_b32 s41, s25
    s_mov_b32 s42, {4096*1280}
    s_lshr_b32 s14, s3, 1
    s_lshl_b32 s48, s4, 1
    s_add_u32 s48, s48, s14
    s_lshl_b32 s49, s5, 1
    s_add_u32 s49, s49, s13
    s_mul_i32 s52, s48, {64*1280}
    s_mul_i32 s57, {'s4' if pc else 's48'}, {TSL}
    s_add_u32 s57, s57, {WS_T}
    s_branch L_Gl
    """)
    a.label("L_Gd")
    a(f"""
    s_cmp_ge_u32 s36, 27
    s_cbranch_scc1 {"L_Gnone" if gpre else "L_Gend"}
    s_sub_u32 s49, s5, 5
    s_lshl_b32 s49, s49, 2
    s_add_u32 s49, s49, s3
    s_cmp_ge_u32 s49, 10
    s_cbranch_scc1 {"L_Gnone" if gpre else "L_Gend"}
    s_mov_b32 s40, s32
    s_mov_b32 s41, s33
    s_mov_b32 s42, {1728*1280}
    s_mul_i32 s52, s36, {64*1280}
    s_mul_i32 s57, s36, {TSL}
    s_add_u32 s57, s57, {WS_T+ZB}
    """)
    if rd2:
        a(f"""
        s_cmp_ge_u32 s49, 8
        s_cbranch_scc1 L_Gl
        s_cmp_ge_u32 s4, 20
        s_cbranch_scc1 L_Gl
        s_lshl_b32 s76, s4, 3
        s_add_u32 s76, s76, s49
        s_lshl_b32 s48, s76, 5
        s_add_u32 s68, s48, {WS_T}
        s_add_u32 s69, s48, {WS_T+32*TS}
        s_add_u32 s70, s48, {WS_T+64*TS}
        s_lshl_b32 s71, s76, 3
        buffer_load_ushort v106, v105, s[44:47], s71 offen
        """)
    a.label("L_Gl")
    a(f"""
    s_lshl_b32 s48, s49, 7
    s_add_u32 s52, s52, s48
    s_add_u32 s53, s52, 5120
    s_mul_i32 s48, s49, {16*3072 if inbox else 512}
    s_add_u32 s57, s57, s48
    s_mov_b32 s60, 0x05040100
    s_mov_b32 s61, 0x07060302
    s_mov_b32 s62, 0x00ff00ff
    s_mov_b32 s63, 0x00ff00ff
    s_add_u32 s54, s12, {WS_OB}
    s_lshl_b32 s55, s14, 8
    s_add_u32 s55, s55, s54
    v_lshrrev_b32 v2, 4, v0
    v_and_b32 v5, 15, v0
    v_mul_u32_u24 v11, {OBS}, v2
    v_lshl_add_u32 v9, v5, 4, v11
    v_lshlrev_b32 v6, 4, v3
    s_lshl_b32 s48, s3, 7
    v_add_u32 v14, s48, v6
    v_lshl_add_u32 v15, v5, 2, v2
    v_lshlrev_b32 v15, 1, v15
    v_add_u32 v15, s48, v15
    """)
    for e in range(8): a(f"v_mov_b32 v{ACC+e}, 0")
    def gather_o():
        for k in range(2):
            a(f"buffer_load_dwordx4 v[{GG+4*k}:{GG+4*k+3}], v9, s[8:11], s55 offen offset:{4*OBS*k} {pfl}")
    def gather_ml():
        for k in range(2):
            a(f"buffer_load_dwordx2 v[{GM+2*k}:{GM+2*k+1}], v11, s[8:11], s54 offen offset:{512+4*OBS*k} {pfl}")
    def perms(ks):
        for k in ks:
            for t in range(4):
                lo, hi = GW + 8 * k + t, GW + 8 * k + 4 + t
                a(f"v_perm_b32 v{88+4*k+t}, v{hi}, v{lo}, s61\nv_perm_b32 v{lo}, v{hi}, v{lo}, s60")
    if gpat == 2:
        a("""
        v_mov_b32 v8, v1
        s_mul_i32 s52, s4, 20
        s_lshl_b32 s53, s5, 2
        s_add_u32 s52, s52, s53
        s_add_u32 s52, s52, s3
        s_mul_i32 s53, s36, 10
        s_add_u32 s53, s53, s49
        s_cmp_ge_u32 s5, 5
        s_cselect_b32 s52, s53, s52
        s_lshl_b32 s52, s52, 13
        """)
    if amp == "q":
        lds_spin(L_QF, 1, sleep=1); ampmark("q")
    if pc:
        a(f"""
        v_lshlrev_b32 v116, 3, v0
        s_lshl_b32 s48, s3, 9
        s_add_u32 s48, s48, {L_OACC}
        s_xor_b32 s15, s48, 1024
        v_add_u32 v117, s15, v116
        v_add_u32 v116, s48, v116
        s_lshl_b32 s48, s13, 2
        v_mov_b32 v118, s48
        v_mov_b32 v119, 1
        """)
    def wload(i):
        a(f"buffer_load_dwordx4 v[{GW+4*i}:{GW+4*i+3}], v8, s[40:43], s{52+i//4} offen offset:{(i%4)*1280} nt")
    for i in range(gpre):
        if i >= gpd: a(f"s_waitcnt vmcnt({gpd-1})")
        wload(i)
    if gpre: mljob()
    if gstep:
        a(f"s_mul_i32 s15, s3, {gstep}\ns_add_u32 s15, s15, {gwait}\ns_min_u32 s15, s15, 8")
        lds_spin(L_IS, "s15", sleep=2)
    else: lds_spin(L_IS, gwait, sleep=issleep)
    ampmark("is")
    if flate:
        a("s_cmp_eq_u32 s37, 0\ns_cbranch_scc1 L_nofl")
        for i in range(10):
            if flate > 1 and i >= flate: a(f"s_waitcnt vmcnt({flate-1})")
            a(f"buffer_load_dwordx4 v[{120}:{123}], v115, s[72:75], s76 offen nt\ns_add_u32 s76, s76, s77")
        a.label("L_nofl")
    gather_ml()
    for i in range(gpre, 8):
        if i - gpre >= gdepth: a(f"s_waitcnt vmcnt({gdepth-1})")
        wload(i)
        if i == max(3, gpre):
            a(f"""
            ds_read_b32 v{GO+1}, v7 offset:{L_TAG}
            ds_read_b32 v{GO+3}, v7 offset:{L_TAG}
            ds_read_b128 v[{GP}:{GP+3}], v6 offset:{L_H}
            """)
    stamp(8); stamp(8, 4)
    if 'B' in no:
        a("s_waitcnt vmcnt(0)")
        stamp(9); stamp(9, 4)
        a("s_branch L_Gend")
    if warm: a.pad_start("PG", warm)
    a(f"s_waitcnt vmcnt({min(4, 8-gpre)}) lgkmcnt(0)")
    perms((0, 1))
    a(f"s_mov_b32 s58, {SPIN}\ns_cmp_lt_u32 s5, 5\ns_cbranch_scc1 L_Gmc")
    if rd2: a(f"v_cmp_gt_u32 vcc, 54, v0\nv_lshlrev_b32 v106, 16, v106\nv_cndmask_b32 v107, 0, v{GO+1}, vcc")
    a("s_waitcnt vmcnt(0)\ns_branch L_Gw")
    a.label("L_Gmr")
    if psleep: a(f"s_sleep {psleep}")
    gather_ml()
    a("s_waitcnt vmcnt(0)")
    a.label("L_Gmc")
    a(f"""
    s_sub_u32 s58, s58, 1
    s_cbranch_scc1 L_Gmx
    v_max3_u32 v2, v{GM}, v{GM+1}, v{GM+2}
    v_max_u32 v2, v2, v{GM+3}
    v_cmp_eq_u32 vcc, -1, v2
    s_cbranch_vccnz L_Gmr
    """)
    a.label("L_Gmx")
    stamp(14, 3)
    if sset == 3: a(f"s_sub_u32 s95, {SPIN}, s58\ns_mul_i32 s95, s95, 100\ns_add_u32 s95, s95, s80\ns_bitset1_b32 s98, 15")
    a(f"""
    v_max_f32 v2, v{GM}, v{GM+2}
    v_mov_b32 v3, v2
    v_permlane16_swap_b32 v3, v2
    v_max_f32 v2, v3, v2
    v_mov_b32 v3, v2
    v_permlane32_swap_b32 v3, v2
    v_max_f32 v2, v3, v2
    v_sub_f32 v12, v{GM}, v2
    v_sub_f32 v13, v{GM+2}, v2
    v_exp_f32 v12, v12
    v_exp_f32 v13, v13
    v_mul_f32 v2, v12, v{GM+1}
    v_fmac_f32 v2, v13, v{GM+3}
    v_mov_b32 v3, v2
    v_permlane16_swap_b32 v3, v2
    v_add_f32 v2, v3, v2
    v_mov_b32 v3, v2
    v_permlane32_swap_b32 v3, v2
    v_add_f32 v2, v3, v2
    v_rcp_f32 v2, v2
    v_mul_f32 v12, v12, v2
    v_mul_f32 v13, v13, v2
    """)
    stamp(9)
    lds_spin(L_OPF, 1, sleep=opfsleep)
    gather_o()
    a(f"s_mov_b32 s58, {SPIN}\ns_waitcnt vmcnt(2)")
    a.label("L_Gw")
    stamp(5, 3)
    perms((2, 3))
    stamp(7, 3)
    a("s_cmp_ge_u32 s5, 5\ns_cbranch_scc1 L_Gdot\ns_branch L_Gchk")
    a.label("L_Gre")
    if psleep: a(f"s_sleep {psleep}")
    gather_o()
    a.label("L_Gchk")
    a(f"""
    s_sub_u32 s58, s58, 1
    s_waitcnt vmcnt(0)
    s_cbranch_scc1 L_Gc
    v_max3_u32 v2, v{GG}, v{GG+1}, v{GG+2}
    v_max3_u32 v3, v{GG+3}, v{GG+4}, v{GG+5}
    v_max3_u32 v2, v2, v{GG+6}, v{GG+7}
    v_max_u32 v2, v2, v3
    v_cmp_eq_u32 vcc, -1, v2
    s_and_b64 exec, exec, vcc
    s_cbranch_execnz L_Gre
    """)
    a.label("L_Gc")
    a("s_mov_b64 exec, -1")
    stamp(10)
    if sset == 3: a(f"s_sub_u32 s86, {SPIN}, s58\ns_mul_i32 s86, s86, 100\ns_add_u32 s86, s86, s80\ns_bitset1_b32 s98, 6")
    for k in range(4): a(f"v_mul_f32 v{GG+k}, v12, v{GG+k}")
    for k in range(4): a(f"v_fmac_f32 v{GG+k}, v13, v{GG+4+k}")
    a(f"""
    v_permlane32_swap_b32 v{GG}, v{GG+2}
    v_permlane32_swap_b32 v{GG+1}, v{GG+3}
    v_add_f32 v{GG}, v{GG}, v{GG+2}
    v_add_f32 v{GG+1}, v{GG+1}, v{GG+3}
    v_permlane16_swap_b32 v{GG}, v{GG+1}
    v_add_f32 v{GG}, v{GG}, v{GG+1}
    v_cvt_pk_bf16_f32 v{GG}, v{GG}, v{GG}
    ds_write_b16 v15, v{GG} offset:{L_GO}
    ds_read_b128 v[{GP}:{GP+3}], v14 offset:{L_GO}
    s_waitcnt lgkmcnt(0)
    """)
    a.label("L_Gdot")
    for k in range(1 if 'g' in no else 4):
        for t in range(4):
            a(f"v_dot2c_f32_bf16 {A(2*t)}, v{GW+8*k+t}, v{GP+k}\nv_dot2c_f32_bf16 {A(2*t+1)}, v{88+4*k+t}, v{GP+k}")
    for e in range(4): a(f"v_permlane32_swap_b32 {A(e)}, {A(e+4)}")
    for e in range(4): a(f"v_add_f32 {A(e)}, {A(e)}, {A(e+4)}")
    for e in range(2): a(f"v_permlane16_swap_b32 {A(e)}, {A(e+2)}")
    for e in range(2): a(f"v_add_f32 {A(e)}, {A(e)}, {A(e+2)}")
    a(f"""
    v_add_f32_dpp v{GO}, {A(0)}, {A(0)} row_ror:8 row_mask:0xf bank_mask:0xf
    v_add_f32_dpp v{GO+2}, {A(1)}, {A(1)} row_ror:8 row_mask:0xf bank_mask:0xf
    """)
    if pc:
        a(f"""
        s_cmp_ge_u32 s5, 5
        s_cbranch_scc1 L_Gst
        ds_write2_b32 v116, v{GO}, v{GO+2} offset0:0 offset1:1
        s_mov_b64 exec, 1
        ds_add_rtn_u32 v2, v118, v119 offset:{L_PCN}
        s_mov_b64 exec, -1
        ds_read_b64 v[4:5], v117
        s_waitcnt lgkmcnt(0)
        v_readfirstlane_b32 s48, v2
        v_add_f32 v{GO}, v{GO}, v4
        v_add_f32 v{GO+2}, v{GO+2}, v5
        s_cmp_eq_u32 s48, 0
        s_cbranch_scc1 L_Gend
        """)
        a.label("L_Gst")
    a(f"""
    s_mov_b64 exec, s[62:63]
    {"" if 'T' in no else f"buffer_store_dwordx4 v[{GO}:{GO+3}], v10, s[8:11], s57 offen sc1"}
    """)
    stamp(11); ampmark("gs")
    if 'T' in no or 'R' in no: a("s_branch L_Gend")
    if rd2:
        a(f"""
        s_cmp_eq_u32 s76, -1
        s_cbranch_scc1 L_Gend
        s_mov_b64 exec, -1
        s_mov_b32 s58, {SPIN}
        """)
        a.label("L_ry")
        if rsleep: a(f"s_sleep {rsleep}")
        a(f"""
        buffer_load_dwordx4 v[24:27], v104, s[64:67], s68 offen sc1
        {"" if pc else "buffer_load_dwordx4 v[28:31], v104, s[64:67], s69 offen sc1"}
        buffer_load_dwordx4 v[32:35], v104, s[64:67], s70 offen sc1
        s_sub_u32 s58, s58, 1
        s_waitcnt vmcnt(0)
        s_cbranch_scc1 L_ryx
        v_xor_b32 v2, v25, v{GO+1}
        v_xor_b32 v3, v33, v107
        v_bitop3_b32 v2, v27, v{GO+1}, v2 bitop3:0xbe
        v_bitop3_b32 v3, v35, v107, v3 bitop3:0xbe
        {"" if pc else f"v_bitop3_b32 v2, v29, v{GO+1}, v2 bitop3:0xbe"}
        {"" if pc else f"v_bitop3_b32 v3, v31, v{GO+1}, v3 bitop3:0xbe"}
        v_or_b32 v2, v2, v3
        v_cmp_ne_u32 vcc, 0, v2
        s_and_b64 exec, exec, vcc
        s_cbranch_execnz L_ry
        """)
        a.label("L_ryx")
        a("s_mov_b64 exec, -1")
        stamp(12)
        a(f"""
        v_permlane32_swap_b32 v32, v34
        {"" if pc else "v_add_f32 v24, v24, v28"}
        {"" if pc else "v_add_f32 v26, v26, v30"}
        v_add_f32 v32, v32, v34
        v_mov_b32 v33, v32
        v_permlane32_swap_b32 v24, v26
        v_add_f32 v24, v24, v26
        v_permlane16_swap_b32 v32, v33
        v_mov_b32 v25, v24
        v_add_f32 v32, v32, v33
        s_nop 0
        v_permlane16_swap_b32 v24, v25
        v_add_f32_dpp v32, v32, v32 row_ror:8 row_mask:0xf bank_mask:0xf
        v_add_f32 v24, v24, v25
        v_add_f32_dpp v32, v32, v32 row_ror:4 row_mask:0xf bank_mask:0xf
        v_add_f32_dpp v24, v24, v24 row_ror:8 row_mask:0xf bank_mask:0xf
        v_add_f32_dpp v32, v32, v32 row_ror:2 row_mask:0xf bank_mask:0xf
        v_add_f32_dpp v24, v24, v24 row_ror:4 row_mask:0xf bank_mask:0xf
        v_cvt_pk_bf16_f32 v32, 0, v32
        v_mul_f32 v2, 0xbfb8aa3b, v32
        v_add_f32_dpp v24, v24, v24 row_ror:2 row_mask:0xf bank_mask:0xf
        v_exp_f32 v2, v2
        v_cvt_pk_bf16_f32 v24, 0, v24
        v_add_f32 v2, 1.0, v2
        v_rcp_f32 v2, v2
        s_mov_b64 exec, s[78:79]
        v_mul_f32 v2, v32, v2
        v_cvt_pk_bf16_f32 v2, 0, v2
        v_mul_f32 v2, v24, v2
        v_cvt_pk_bf16_f32 v2, 0, v2
        v_add_f32 v2, v106, v2
        v_cvt_pk_bf16_f32 v2, v2, v2
        buffer_store_short v2, v105, s[72:75], s71 offen
        s_cmp_lg_u32 s76, 0
        s_cbranch_scc1 L_rnb
        s_mov_b64 exec, 1
        buffer_store_dword v{GO+1}, v7, s[8:11], 0 offen sc1
        """)
    else:
        a(f"""
        s_sub_u32 s48, s5, 5
        s_cmp_ge_u32 s48, 2
        s_cbranch_scc1 L_Gend
        s_cmp_ge_u32 s4, 20
        s_cbranch_scc1 L_Gend
        s_mov_b64 exec, -1
        s_lshl_b32 s6, s4, 3
        s_add_u32 s6, s6, s49
        s_mov_b32 s40, s8
        s_mov_b32 s41, s9
        s_mov_b32 s42, {WS_T+160*3072 if inbox else T_END}
        s_mov_b32 s44, s16
        s_mov_b32 s45, s17
        s_mov_b32 s46, 1280
        v_lshrrev_b32 v3, 1, v0
        v_and_b32 v4, 1, v0
        v_mul_u32_u24 v3, {TSL}, v3
        v_lshl_add_u32 v8, v4, 4, v3
        s_mul_i32 s48, s6, {3072 if inbox else 32}
        s_add_u32 s52, s48, {WS_T}
        s_add_u32 s53, s48, {WS_T+32*TSL}
        s_add_u32 s54, s48, {WS_T+ZB}
        v_lshrrev_b32 v3, 5, v0
        v_lshl_add_u32 v4, v4, 1, v3
        v_lshlrev_b32 v9, 1, v4
        s_lshl_b32 s55, s6, 3
        buffer_load_ushort v10, v9, s[44:47], s55 offen
        v_mov_b32 v32, 0
        v_mov_b32 v34, 0
        s_mov_b32 s44, s34
        s_mov_b32 s45, s35
        s_mov_b32 s58, {SPIN}
        s_mov_b32 s56, 3
        s_mov_b32 s57, 3
        s_mov_b32 exec_hi, 0x3fffff
        """)
        a.label("L_rz")
        if zsleep: a(f"s_sleep {zsleep}")
        a(f"""
        buffer_load_dwordx4 v[32:35], v8, s[40:43], s54 offen sc1
        s_sub_u32 s58, s58, 1
        s_waitcnt vmcnt(0)
        s_cbranch_scc1 L_rzx
        v_xor_b32 v2, v33, v{GO+1}
        v_bitop3_b32 v2, v35, v{GO+1}, v2 bitop3:0xbe
        v_cmp_ne_u32 vcc, 0, v2
        s_and_b64 exec, exec, vcc
        s_cbranch_execnz L_rz
        """)
        a.label("L_rzx")
        a(f"""
        s_mov_b64 exec, -1
        buffer_load_dwordx4 v[24:27], v8, s[40:43], s52 offen sc1
        {"" if pc else "buffer_load_dwordx4 v[28:31], v8, s[40:43], s53 offen sc1"}
        v_permlane32_swap_b32 v32, v34
        v_lshlrev_b32 v10, 16, v10
        v_add_f32 v32, v32, v34
        v_mov_b32 v33, v32
        v_permlane16_swap_b32 v32, v33
        v_add_f32 v32, v32, v33
        """)
        for r in (8, 4, 2): a(f"v_add_f32_dpp v32, v32, v32 row_ror:{r} row_mask:0xf bank_mask:0xf")
        a(f"""
        v_cvt_pk_bf16_f32 v32, 0, v32
        v_mul_f32 v2, 0xbfb8aa3b, v32
        v_exp_f32 v2, v2
        v_add_f32 v2, 1.0, v2
        v_rcp_f32 v2, v2
        v_mul_f32 v2, v32, v2
        v_cvt_pk_bf16_f32 v12, 0, v2
        s_mov_b32 s58, {SPIN}
        """)
        def yload(b):
            a(f"buffer_load_dwordx4 v[{b}:{b+3}], v8, s[40:43], s52 offen sc1")
            if not pc: a(f"buffer_load_dwordx4 v[{b+4}:{b+7}], v8, s[40:43], s53 offen sc1")
        def ycheck(b):
            if pc:
                a(f"v_xor_b32 v2, v{b+1}, v{GO+1}\nv_bitop3_b32 v2, v{b+3}, v{GO+1}, v2 bitop3:0xbe\nv_cmp_ne_u32 vcc, 0, v2")
                return
            a(f"""
            v_xor_b32 v2, v{b+1}, v{GO+1}
            v_xor_b32 v3, v{b+5}, v{GO+1}
            v_bitop3_b32 v2, v{b+3}, v{GO+1}, v2 bitop3:0xbe
            v_bitop3_b32 v3, v{b+7}, v{GO+1}, v3 bitop3:0xbe
            v_or_b32 v2, v2, v3
            v_cmp_ne_u32 vcc, 0, v2
            """)
        if not dual:
            a("s_branch L_ryc")
            a.label("L_ry")
            if rsleep: a(f"s_sleep {rsleep}")
            yload(24)
            a.label("L_ryc")
            a("s_sub_u32 s58, s58, 1\ns_waitcnt vmcnt(0)\ns_cbranch_scc1 L_ryx")
            ycheck(24)
            a("s_and_b64 exec, exec, vcc\ns_cbranch_execnz L_ry")
            a.label("L_ryx")
            a("s_mov_b64 exec, -1")
            stamp(12)
            a("v_add_f32 v24, v24, v28\nv_add_f32 v26, v26, v30")
        else:
            yload(36)
            a("s_mov_b64 s[64:65], -1\ns_mov_b64 s[66:67], -1")
            a.label("L_ry")
            a("s_sub_u32 s58, s58, 1\ns_waitcnt vmcnt(" + ("1" if pc else "2") + ")\ns_cbranch_scc1 L_ryA\ns_mov_b64 exec, s[64:65]")
            ycheck(24)
            a("s_and_b64 exec, exec, vcc\ns_cbranch_execz L_ryA\ns_mov_b64 s[64:65], exec")
            yload(24)
            a("s_waitcnt vmcnt(" + ("1" if pc else "2") + ")\ns_mov_b64 exec, s[66:67]")
            ycheck(36)
            a("s_and_b64 exec, exec, vcc\ns_cbranch_execz L_ryB\ns_mov_b64 s[66:67], exec")
            yload(36)
            a("s_branch L_ry")
            a.label("L_ryB")
            a("s_mov_b64 exec, -1\n" + ("v_mov_b32 v44, v36\nv_mov_b32 v46, v38" if pc else "v_add_f32 v44, v36, v40\nv_add_f32 v46, v38, v42") + "\ns_branch L_ryx")
            a.label("L_ryA")
            a("s_mov_b64 exec, -1\n" + ("v_mov_b32 v44, v24\nv_mov_b32 v46, v26" if pc else "v_add_f32 v44, v24, v28\nv_add_f32 v46, v26, v30"))
            a.label("L_ryx")
            stamp(12)
        Y = 44 if dual else 24
        a(f"""
        s_nop 0
        v_permlane32_swap_b32 v{Y}, v{Y+2}
        v_add_f32 v{Y}, v{Y}, v{Y+2}
        v_mov_b32 v{Y+1}, v{Y}
        v_permlane16_swap_b32 v{Y}, v{Y+1}
        v_add_f32 v{Y}, v{Y}, v{Y+1}
        """)
        for r in (8, 4, 2): a(f"v_add_f32_dpp v{Y}, v{Y}, v{Y} row_ror:{r} row_mask:0xf bank_mask:0xf")
        a(f"""
        v_cvt_pk_bf16_f32 v{Y}, 0, v{Y}
        v_mul_f32 v2, v{Y}, v12
        v_cvt_pk_bf16_f32 v2, 0, v2
        v_add_f32 v2, v10, v2
        v_cvt_pk_bf16_f32 v2, v2, v2
        s_mov_b64 exec, s[56:57]
        buffer_store_short v2, v9, s[44:47], s55 offen {outsc}
        s_cmp_lg_u32 s6, 0
        s_cbranch_scc1 L_rnb
        s_mov_b64 exec, 1
        buffer_store_dword v{GO+1}, v7, s[8:11], 0 offen sc1
        """)
    if amp:
        ampmark("end")
        a("""
        s_memrealtime s[94:95]
        s_waitcnt lgkmcnt(0)
        s_sub_u32 s92, s92, s90
        s_mul_i32 s92, s92, 4
        s_min_u32 s92, s92, 100000
        s_add_u32 s94, s94, s92
        """)
        a.label("L_amp")
        a("""
        s_memrealtime s[96:97]
        s_waitcnt lgkmcnt(0)
        s_sub_u32 s92, s96, s94
        s_cmp_lt_i32 s92, 0
        s_cbranch_scc1 L_amp
        """)
    a.label("L_rnb")
    if warm: a.pad_end("L_wback")
    if stamps:
        a("s_waitcnt vmcnt(0)")
        stamp(13)
    a.label("L_Gend")
    if stamps:
        a("s_movk_i32 s48, 0xf1f\ns_cmp_ge_u32 s5, 5\ns_cselect_b32 s48, 0x301f, s48\ns_cmp_lg_u32 s3, 0\ns_cselect_b32 s48, 0x401e, s48")
        if sset == 1: a("s_bitcmp1_b32 s98, 1\ns_cselect_b32 s49, 0x1f1e, 0\ns_and_b32 s48, s48, 1\ns_or_b32 s48, s48, s49")
        flush_stamps("s48")
    a.label("L_end")
    a("s_endpgm")
    if gpre:
        a.label("L_Gnone")
        mljob()
        a("s_branch L_Gend")
    a.label("L_Amix")
    a(f"""
    buffer_store_dwordx2 v[2:3], v9, s[8:11], s54 offen sc1
    s_mov_b64 exec, s[62:63]
    buffer_store_dwordx4 v[44:47], v1, s[8:11], s55 offen sc1
    s_mov_b64 exec, -1
    s_mov_b32 s6, s50
    s_mov_b32 s58, {SPIN}
    v_mov_b32 v4, 2
    s_waitcnt vmcnt(0)
    s_atomic_swap s6, s[8:9], s49 offset:32
    """)
    a.label("L_Amp")
    a(f"""
    s_sleep {a2sleep}
    s_load_dwordx8 s[64:71], s[8:9], s52 offset:32 glc
    s_sub_u32 s58, s58, 1
    s_cbranch_scc1 L_Amg
    s_waitcnt lgkmcnt(0)
    """)
    for k in range(4): a(f"s_cmp_eq_u64 s[{64+2*k}:{65+2*k}], s[50:51]\ns_cbranch_scc0 L_Amp")
    a.label("L_Amg")
    for k in range(4): a(f"buffer_load_dwordx4 v[{24+4*k}:{27+4*k}], v1, s[8:11], s53 offen offset:{1024*k} sc1")
    a("s_branch L_A2s")

    a.raw(".p2align 6")
    a.label("L_KV")
    K0, V0 = 24, 88
    a(f"""
    s_setprio {kvprio}
    s_mov_b32 s42, 0x100000
    s_mov_b32 s46, 0x100000
    s_lshl_b32 s48, s4, 23
    s_add_u32 s48, s48, {28672*256}
    s_sub_u32 s6, s3, 4
    """)
    if hmul is None:
        kmask, kstep = 0x1ffff, 8192 * blk
        a(f"s_lshl_b32 s50, s5, 17\ns_add_u32 s48, s48, s50\ns_mul_i32 s49, s2, {rotmul}\ns_add_u32 s49, s49, s3\ns_mov_b32 s42, 0x20000\ns_mov_b32 s46, 0x20000")
    else:
        kmask, kstep = 0xfffff, 65536 * blk
        a(f"s_mul_i32 s49, s4, {hmul}\ns_lshl_b32 s50, s5, 3\ns_add_u32 s49, s49, s50\ns_add_u32 s49, s49, s6")
    a(f"""
    s_mul_i32 s52, s49, {1024*blk}
    s_and_b32 s52, s52, {kmask}
    s_mov_b32 s60, 0xcccccccc
    s_mov_b32 s61, 0xcccccccc
    s_mov_b32 s62, 0xaaaaaaaa
    s_mov_b32 s63, 0xaaaaaaaa
    v_and_b32 v3, 15, v0
    v_lshrrev_b32 v4, 4, v0
    v_lshlrev_b32 v5, 5, v3
    v_lshl_or_b32 v6, v4, 3, v5
    v_lshlrev_b32 v3, 4, v3
    s_mul_i32 s51, s5, {OBS}
    s_add_u32 s51, s51, s12
    s_add_u32 s51, s51, {WS_OB}
    """)
    for e in range(8): a(f"v_mov_b32 v{ACC+e}, 0")
    a(f"""
    s_waitcnt lgkmcnt(0)
    s_add_u32 s40, s18, s48
    s_addc_u32 s41, s19, 0
    s_add_u32 s44, s20, s48
    s_addc_u32 s45, s21, 0
    """)
    if tlb:
        a(f"""
        s_cmp_lg_u32 s6, 0
        s_cbranch_scc1 L_notlb
        s_mul_i32 s50, s4, {128*1280}
        s_add_u32 s64, s24, s50
        s_addc_u32 s65, s25, 0
        s_min_u32 s50, s4, 26
        s_mul_i32 s50, s50, {64*1280}
        s_add_u32 s66, s32, s50
        s_addc_u32 s67, s33, 0
        v_mov_b32 v12, s44
        v_mov_b32 v13, s45
        v_writelane_b32 v12, s40, 1
        v_writelane_b32 v13, s41, 1
        v_writelane_b32 v12, s64, 2
        v_writelane_b32 v13, s65, 2
        v_writelane_b32 v12, s66, 3
        v_writelane_b32 v13, s67, 3
        v_writelane_b32 v12, s8, 4
        v_writelane_b32 v13, s9, 4
        v_writelane_b32 v12, s34, 5
        v_writelane_b32 v13, s35, 5
        s_mov_b64 exec, {tlb}
        global_load_dword v14, v[12:13], off nt
        s_mov_b64 exec, -1
        """)
        a.label("L_notlb")
    if not kpre: a("s_barrier")
    if bal is not None:
        a(f"s_and_b32 s48, s2, 1\ns_mul_i32 s48, s48, {bal}\ns_cmp_lt_u32 s6, s48\ns_cselect_b64 vcc, 0, -1")
        depth0 = depth; depth = depth + 1
    if fc:
        assert max(fc["cp"]) < 16 + qpos + 3
        a("v_mov_b32 v15, 1")
    T = lambda i: f"v{K0+4*i}"
    def w_q():
        stamp(8, 2)
        lds_spin(L_QF, 1, sleep=1)
        a("s_mov_b32 s7, s48")
        stamp(9, 2)
        a(f"ds_read_b128 v[8:11], v3 offset:{L_Q}\ns_waitcnt lgkmcnt(0)")
        for i in range(16): a(f"v_dot2_f32_bf16 {T(i)}, {T(i)}, v8, 0")
        for i in range(16): a(f"v_dot2c_f32_bf16 {T(i)}, v{K0+4*i+1}, v9")
    def w_s2():
        for t in range(2, 4):
            for i in range(16): a(f"v_dot2c_f32_bf16 {T(i)}, v{K0+4*i+t}, v{8+t}")
    def w_s3():
        for k in range(8): a(f"v_add_f32_dpp {T(k)}, {T(k)}, {T(k)} row_ror:8 row_mask:0xf bank_mask:0x3")
        for k in range(8): a(f"v_add_f32_dpp {T(k)}, {T(k+8)}, {T(k+8)} row_ror:8 row_mask:0xf bank_mask:0xc")
        for k in range(4): a(f"v_add_f32_dpp {T(k)}, {T(k)}, {T(k)} row_shl:4 row_mask:0xf bank_mask:0x5")
        for k in range(4): a(f"v_add_f32_dpp {T(k)}, {T(k+4)}, {T(k+4)} row_shr:4 row_mask:0xf bank_mask:0xa")
        for k in range(4): a(f"v_add_f32_dpp {T(k)}, {T(k)}, {T(k)} quad_perm:[2,3,0,1] row_mask:0xf bank_mask:0xf")
        for k in range(2): a(f"v_cndmask_b32 {T(k)}, {T(k)}, {T(k+2)}, s[60:61]")
        for k in range(2): a(f"v_add_f32_dpp {T(k)}, {T(k)}, {T(k)} quad_perm:[1,0,3,2] row_mask:0xf bank_mask:0xf")
        a(f"""
        v_cndmask_b32 v2, {T(0)}, {T(1)}, s[62:63]
        v_cvt_pk_bf16_f32 v2, 0, v2
        v_mul_f32 v2, {SCALE}, v2
        v_cvt_pk_bf16_f32 v2, 0, v2
        v_mul_f32 v2, {LOG2E}, v2
        v_mov_b32 v14, v2
        """)
    def w_s4():
        allreduce("v_max_f32", "v14", "v3")
        a(f"""
        v_sub_f32 v2, v2, v14
        v_exp_f32 v2, v2
        s_lshl_b32 s48, s6, 3
        v_mov_b32 v4, s48
        v_mov_b32 v15, v2
        v_cvt_pk_bf16_f32 v12, v2, 0
        v_cvt_pk_bf16_f32 v13, 0, v2
        """)
        allreduce("v_add_f32", "v15", "v3")
        a(f"""
        v_mov_b32 v9, 1
        s_mov_b64 exec, 1
        ds_write_b64 v4, v[14:15] offset:{L_POST}
        ds_add_u32 v7, v9 offset:{L_C1}
        s_mov_b64 exec, -1
        """)
        stamp(6)
    def pv(i):
        for t in range(4):
            a(f"v_dot2c_f32_bf16_dpp v{ACC+2*t}, v12, v{V0+4*i+t} row_newbcast:{i} row_mask:0xf bank_mask:0xf")
            a(f"v_dot2c_f32_bf16_dpp v{ACC+2*t+1}, v13, v{V0+4*i+t} row_newbcast:{i} row_mask:0xf bank_mask:0xf")
    chunks = [w_q, w_s2, w_s3, w_s4]
    assert depth - 1 <= qpos <= 11
    pv_done = 0
    for n in range(32):
        if kpre and n == kpre: a("s_barrier")
        if dsched and n in dsched: depth = dsched[n]
        t, i = divmod(n, 16)
        r = (K0, V0)[t] + 4 * i
        srd = ("s[40:43]", "s[44:47]")[t]
        if warm and warmkv and n == 12: a.pad_start("PK1", warm)
        if warm and warmkv and n == 16 + qpos + 5:
            a.pad_end("L_wback"); a.pad_start("PK2", warm)
        if bal is not None and n >= depth0:
            if n < balfrom: a(f"s_waitcnt vmcnt({depth0-1})")
            else:
                L = a.newlabel("Lb")
                a(f"s_waitcnt vmcnt({depth-1})\ns_cbranch_vccz {L}\ns_waitcnt vmcnt({depth0-1})")
                a.label(L)
        elif fc and n > fc["cp"][1] + 1:
            L = a.newlabel("Lf")
            a(f"s_waitcnt vmcnt({depth-1}) lgkmcnt(0)\nv_readfirstlane_b32 s53, v5\ns_cmp_gt_u32 s53, {n}\ns_cbranch_scc0 {L}\ns_waitcnt vmcnt({fc['dlow']-1})")
            a.label(L)
        elif n >= depth: a(f"s_waitcnt vmcnt({depth-1})")
        a(f"buffer_load_dwordx4 v[{r}:{r+3}], v1, {srd}, s52 offen offset:{(i%blk)*1024} nt")
        if fc and fc["cp"][1] + 1 <= n < 31: a(f"ds_read_b32 v5, v7 offset:{L_HOLD}")
        if fc and n in fc["cp"]: a(f"s_mov_b64 exec, 1\nds_add_u32 v7, v15 offset:{L_PC}\ns_mov_b64 exec, -1")
        if sset == 4 and n in (4, 6, 8, 12, 16, 20, 24, 28): stamp({4:1, 6:2, 8:3, 12:4, 16:8, 20:9, 24:10, 28:11}[n], 4)
        if n < 31 and (i % blk) == blk - 1: a(f"s_add_u32 s52, s52, {kstep}\ns_and_b32 s52, s52, {kmask}")
        if n == ispos:
            assert not chunks
            a(f"s_mov_b64 exec, 1\nds_add_u32 v7, v9 offset:{L_IS}\ns_mov_b64 exec, -1")
        if n == 31:
            stamp(5)
            break
        if n >= 16 + qpos:
            if chunks: chunks.pop(0)()
            else:
                avail = n - depth - 16 + 1
                k = max(pv_done, min(avail, pv_done + 4))
                for q in range(pv_done, k): pv(q)
                pv_done = k
    a("v_and_b32 v3, 7, v0\nv_lshlrev_b32 v3, 3, v3")
    stamp(10, 2)
    lds_spin(L_C1, 8, sleep=1)
    stamp(11, 2)
    a(f"""
    ds_read_b32 v2, v3 offset:{L_POST}
    s_waitcnt lgkmcnt(0)
    """)
    for r in (4, 2, 1): a(f"v_max_f32_dpp v2, v2, v2 row_ror:{r} row_mask:0xf bank_mask:0xf")
    a("v_sub_f32 v15, v14, v2\nv_exp_f32 v15, v15")
    a(f"""
    v_lshlrev_b32 v5, 3, v0
    s_lshl_b32 s49, s6, 9
    v_add_u32 v4, s49, v5
    """)
    stamp(12, 2)
    for q in range(pv_done, 16):
        if q >= 16 - depth: a(f"s_waitcnt vmcnt({15-q})")
        pv(q)
    stamp(15); stamp(15, 2); stamp(15, 4)
    if 'v' not in no:
        for e in range(4): a(f"v_permlane32_swap_b32 {A(e)}, {A(e+4)}")
        for e in range(4): a(f"v_add_f32 {A(e)}, {A(e)}, {A(e+4)}")
        for e in range(2): a(f"v_permlane16_swap_b32 {A(e)}, {A(e+2)}")
        for e in range(2): a(f"v_add_f32 {A(e)}, {A(e)}, {A(e+2)}")
    a(f"""
    v_mul_f32 {A(0)}, {A(0)}, v15
    v_mul_f32 {A(1)}, {A(1)}, v15
    ds_write_b64 v4, v[{ACC}:{ACC+1}] offset:{L_OACC}
    s_mov_b64 exec, 1
    ds_add_rtn_u32 v2, v7, v9 offset:{L_C2}
    s_mov_b64 exec, -1
    """)
    rd = f"""
    ds_read2st64_b64 v[24:27], v5 offset0:{L_OACC//512} offset1:{L_OACC//512+1}
    ds_read2st64_b64 v[28:31], v5 offset0:{L_OACC//512+2} offset1:{L_OACC//512+3}
    ds_read2st64_b64 v[32:35], v5 offset0:{L_OACC//512+4} offset1:{L_OACC//512+5}
    ds_read2st64_b64 v[36:39], v5 offset0:{L_OACC//512+6} offset1:{L_OACC//512+7}
    """
    if spec: a(rd + "s_waitcnt lgkmcnt(4)" if not stamps or True else "")
    else: a("s_waitcnt lgkmcnt(0)")
    a(f"""
    v_readfirstlane_b32 s48, v2
    s_cmp_lg_u32 s48, 7
    s_cbranch_scc1 L_notlast
    """)
    if not spec: a(rd)
    a(f"""
    s_waitcnt lgkmcnt(2)
    v_pk_add_f32 v[24:25], v[24:25], v[26:27]
    v_pk_add_f32 v[28:29], v[28:29], v[30:31]
    v_pk_add_f32 v[24:25], v[24:25], v[28:29]
    s_waitcnt lgkmcnt(0)
    v_pk_add_f32 v[32:33], v[32:33], v[34:35]
    v_pk_add_f32 v[36:37], v[36:37], v[38:39]
    v_pk_add_f32 v[24:25], v[24:25], v[32:33]
    v_pk_add_f32 v[24:25], v[24:25], v[36:37]
    """)
    mstore("buffer_store_dwordx2 v[24:25], v6, s[8:11], s51 offen")
    a(f"ds_write_b32 v7, v9 offset:{L_OPF}")
    if warm and warmkv: a.pad_end("L_wback")
    stamp(7); flush_stamps("0xfffe")
    a("s_endpgm")
    a.label("L_notlast")
    a.label("L_end3")
    flush_stamps("0x4000" if sset == 0 else "0")
    a.label("L_last")
    a("s_endpgm")
    nv = 160 if stamps else 152
    a.raw('.section .rodata,"a"'); a.raw(".p2align 6"); a.raw(f".amdhsa_kernel {KN}")
    a.raw(f"  .amdhsa_next_free_vgpr {nv}"); a.raw("  .amdhsa_next_free_sgpr 100"); a.raw(f"  .amdhsa_accum_offset {(nv+3)//4*4}")
    a.raw("  .amdhsa_group_segment_fixed_size 0"); a.raw("  .amdhsa_kernarg_size 96"); a.raw("  .amdhsa_user_sgpr_count 2")
    a.raw("  .amdhsa_user_sgpr_kernarg_segment_ptr 1"); a.raw("  .amdhsa_system_sgpr_workgroup_id_x 1"); a.raw(".end_amdhsa_kernel")
    open(path, "w").write(a.text())

if __name__ == "__main__":
    F=[0,2,4]
    gen("f0.s", ftab=F)
    gen("f1.s", ftab=F, xpos=2)
    gen("f2.s", ftab=F, xpos=5)
    gen("f3.s", ftab=F, kpre=1)
    gen("f4.s", ftab=F, kpre=2)
    gen("f5.s", ftab=F, kpre=4)
    gen("f6.s", ftab=F, cpf=False)
```
